```python
import torch

def _softmax(x, axis=-1):
    return torch.softmax(x, dim=axis)
def _gelu(x):
    return torch.nn.functional.gelu(x, approximate="tanh")
def _silu(x):
    return torch.nn.functional.silu(x)
def _sigmoid(x):
    return torch.sigmoid(x)
def _layernorm(x, axis=-1, eps=1e-5):
    m = x.mean(dim=axis, keepdim=True)
    v = x.var(dim=axis, keepdim=True, unbiased=False)
    return (x - m) / torch.sqrt(v + eps)
def _scatter_add(tgt, idx, src, axis=0):
    return tgt.clone().index_add_(axis, idx, src)
def _segment_sum(src, seg, n):
    out = torch.zeros((n,) + src.shape[1:], dtype=src.dtype)
    return out.index_add_(0, seg, src)
def _pad(x, pw):
    flat = tuple(v for pair in reversed(pw) for v in pair)
    return torch.nn.functional.pad(x, flat)

kernel_name = 'standalone__channel_attn_cbam__vision'

def setup_inputs():

    _w = (lambda a: (lambda t: t.to(torch.bfloat16) if t.is_floating_point() else t)(torch.as_tensor(a)))
    H = W = 224
    C = 192
    r = max(C // 4, 1)
    return {
        "x": _w((lambda *s: torch.randn(*s, dtype=torch.bfloat16) * 0.2)(1, H, W, C) + (lambda *s: torch.randn(*s, dtype=torch.bfloat16) * 0.2)(1, 1, 1, C) * 2.0),
        "w1": _w((lambda *s: torch.randn(*s, dtype=torch.bfloat16) * 0.2)(C, r)),
        "w2": _w((lambda *s: torch.randn(*s, dtype=torch.bfloat16) * 0.2)(r, C)),
    }

def reference(x, w1, w2):
    B, H, W, C = x.shape
    xf = x.reshape(B, H * W, C)
    gap = torch.mean(xf, 1)
    gmp = torch.amax(xf, 1)
    h_a = gap @ w1
    h_a = h_a * (lambda x, dt: x.to(dt))(h_a > 0, h_a.dtype)
    h_m = gmp @ w1
    h_m = h_m * (lambda x, dt: x.to(dt))(h_m > 0, h_m.dtype)
    scale = _sigmoid(h_a @ w2 + h_m @ w2)
    return x * scale[:, None, None, :]
```

```python
from build import build, KN
HEAD = open('standalone__channel_attn_cbam__vision.s.ref').read().split('; Override')[0]
def gen(Q=2, lf='', sf='sc1', NREP=8, diag=False, wpos=None, repstride=4352, pf1='sc1', pf2='sc1', pst='sc1', cal=None, now=False, wf='', stop=0):
    NW=3*Q; block=NW*64; nfull=24//Q; step=3072*Q
    if wpos is None: wpos=nfull//3
    L=[]; A=L.append
    W1L,W2L=0,18432; REDL=36864; VECL=REDL+NW*512; SCL=VECL+3*768; LDS=SCL+768
    INBOX=4096; OUT2=0x80000
    D0=48; ND=4*(nfull+1); A1=D0+ND; B2=A1+72; NV=B2+24
    def st(k):
        if diag or cal==k: A(f"s_memrealtime s[{60+2*k}:{61+2*k}]")
    st(0)
    A("s_cmp_ge_u32 s2, 256"); A("s_cbranch_scc1 L_end")
    A("s_load_dwordx8 s[4:11], s[0:1], 0"); A("s_load_dwordx2 s[14:15], s[0:1], 40")
    A("v_lshrrev_b32 v1, 6, v0"); A("v_and_b32 v0, 63, v0")
    A("v_readfirstlane_b32 s16, v1")
    A("s_mul_i32 s3, s2, 75264")
    A("v_lshrrev_b32 v2, 3, v0"); A("v_and_b32 v3, 7, v0")
    A("s_mul_i32 s17, s16, 0x5556"); A("s_lshr_b32 s17, s17, 16")
    A("s_mul_i32 s18, s17, 3"); A("s_sub_u32 s18, s16, s18")
    A("s_mul_i32 s19, s17, 3072"); A("s_lshl_b32 s30, s18, 7"); A("s_add_u32 s19, s19, s30")
    A("v_mul_u32_u24 v2, 384, v2"); A("v_lshl_add_u32 v2, v3, 4, v2"); A("v_add_u32 v1, s19, v2")
    A("s_mov_b32 s22, 75264"); A("s_mov_b32 s23, 0x20000")
    A("v_lshlrev_b32 v4, 4, v0")
    A("s_waitcnt lgkmcnt(0)")
    A("s_add_u32 s20, s4, s3"); A("s_addc_u32 s21, s5, 0")
    def xload(j,so=None):
        r=D0+4*j; so=j*step if so is None else so
        if so==0: A(f"buffer_load_dwordx4 v[{r}:{r+3}], v1, s[20:23], 0 offen {lf}")
        else:
            A(f"s_mov_b32 s30, {so}"); A(f"buffer_load_dwordx4 v[{r}:{r+3}], v1, s[20:23], s30 offen {lf}")
    nwl=0 if now else 36//NW
    def wload():
        A("s_load_dword s34, s[14:15], 0")
        if now: return
        if NW%2==0:
            h=NW//2
            A(f"s_cmp_lt_u32 s16, {h}"); A("s_cselect_b32 s36, s6, s8"); A("s_cselect_b32 s37, s7, s9")
            A(f"s_cselect_b32 s31, 0, {h}"); A("s_sub_u32 s31, s16, s31"); A(f"s_mul_i32 s31, s31, {nwl*1024}")
            A("s_mov_b32 s38, 18432"); A("s_mov_b32 s39, 0x20000")
            A(f"s_mul_i32 s32, s16, {nwl*1024}")
            for i in range(nwl):
                if i%4==0:
                    A(f"s_add_u32 s33, s32, {i*1024}"); A("s_mov_b32 m0, s33"); A(f"s_add_u32 s30, s31, {i*1024}")
                A(f"buffer_load_dwordx4 v4, s[36:39], s30 offen offset:{(i%4)*1024} {wf} lds")
        else:
            n=18//NW
            for wi,(lo,base) in enumerate(((6,W1L),(8,W2L))):
                A(f"s_mov_b32 s36, s{lo}"); A(f"s_mov_b32 s37, s{lo+1}"); A("s_mov_b32 s38, 18432"); A("s_mov_b32 s39, 0x20000")
                A(f"s_mul_i32 s31, s16, {n*1024}")
                for i in range(n):
                    if i%3==0:
                        A(f"s_add_u32 s30, s31, {i*1024}"); A(f"s_add_u32 s33, s30, {base}"); A("s_mov_b32 m0, s33"); A("s_nop 0")
                    A(f"buffer_load_dwordx4 v4, s[36:39], s30 offen offset:{(i%3)*1024} {wf} lds")
    for j in range(nfull):
        if j==wpos: wload()
        xload(j)
    if wpos>=nfull: wload()
    A(f"s_cmp_lg_u32 s17, {Q-1}"); A("s_cbranch_scc1 L_notail")
    xload(nfull, nfull*step-(Q-1)*3072)
    A("L_notail:")
    st(1)
    A("s_add_u32 s24, s10, s3"); A("s_addc_u32 s25, s11, 0"); A("s_mov_b32 s26, 75264"); A("s_mov_b32 s27, 0x20000")
    A("s_mov_b32 s40, s14"); A("s_mov_b32 s41, s15"); A("s_mov_b32 s42, 0x100000"); A("s_mov_b32 s43, 0x20000")
    A("v_and_b32 v5, 1, v0"); A("v_lshlrev_b32 v5, 4, v5"); A("v_mov_b32 v6, 0x3f80"); A("v_lshlrev_b32 v5, v5, v6")
    A("v_bfe_u32 v6, v0, 2, 2")
    for d in range(4):
        A(f"v_cmp_eq_u32 vcc, {d}, v6"); A("s_nop 1"); A(f"v_cndmask_b32 v{8+d}, 0, v5, vcc")
    def acc(j,first):
        r=D0+4*j
        A(f"v_mfma_f32_16x16x32_bf16 v[12:15], v[8:11], v[{r}:{r+3}], "+("0" if first else "v[12:15]"))
    def mx(j,j2=None):
        r=D0+4*j
        for d in range(4):
            if j2 is not None:
                r2=D0+4*j2
                A(f"v_pk_max_i16 v{16+d}, v{r+d}, v{r2+d}"); A(f"v_pk_min_u16 v{20+d}, v{r+d}, v{r2+d}")
            else:
                A(f"v_pk_max_i16 v{16+d}, v{16+d}, v{r+d}"); A(f"v_pk_min_u16 v{20+d}, v{20+d}, v{r+d}")
    def accum(tail):
        n=nfull+(1 if tail else 0)
        for j in range(n):
            out=n-1-j+(nwl if j<wpos and (wpos<nfull or j<nfull) else 0)
            A(f"s_waitcnt vmcnt({out})")
            acc(j,j==0)
            if j==0: continue
            if j==nfull: A("s_mov_b64 exec, 0xffffffff")
            mx(j,0 if j==1 else None)
            if j==nfull: A("s_mov_b64 exec, -1")
    if Q==1: A('s_nop 0'); accum(True)
    else:
        A(f"s_cmp_lg_u32 s17, {Q-1}"); A("s_cbranch_scc1 L_acc0")
        accum(True); A("s_branch L_acc1"); A("L_acc0:"); accum(False); A("L_acc1:")
    A("s_waitcnt vmcnt(0)")
    st(2)
    A("s_mov_b32 s30, 0x7fff7fff")
    for d in range(4):
        A(f"v_pk_ashrrev_i16 v{24+d}, 15, v{16+d} op_sel_hi:[0,1]"); A(f"v_xor_b32 v{20+d}, s30, v{20+d}")
    for d in range(4): A(f"v_bfi_b32 v{16+d}, v{24+d}, v{20+d}, v{16+d}")
    A("s_waitcnt lgkmcnt(0)")
    A("s_mul_i32 s34, s34, 1664525"); A("s_add_u32 s34, s34, 1013904223")
    A("v_permlane32_swap_b32 v16, v18"); A("v_permlane32_swap_b32 v17, v19")
    A("v_add_f32_dpp v12, v12, v12 row_ror:8 row_mask:0xf bank_mask:0xf")
    A("v_pk_max_i16 v16, v16, v18"); A("v_pk_max_i16 v17, v17, v19")
    A("v_add_f32_dpp v13, v13, v13 row_ror:8 row_mask:0xf bank_mask:0xf")
    A("v_mov_b32 v15, s34")
    A("v_permlane16_swap_b32 v16, v17")
    A("v_lshrrev_b32 v6, 4, v0")
    A("v_pk_max_i16 v16, v16, v17")
    A("v_lshl_add_u32 v6, v3, 2, v6")
    A("s_lshl_b32 s30, s18, 5")
    A("v_mov_b32_dpp v17, v16 row_ror:8 row_mask:0xf bank_mask:0xf")
    A("v_add_u32 v7, s30, v6")
    A("v_pk_max_i16 v14, v16, v17")
    A("v_lshlrev_b32 v7, 12, v7"); A("s_lshl_b32 s30, s2, 4"); A(f"s_add_u32 s30, s30, {INBOX}")
    if Q>1:
        A("s_cmp_eq_u32 s17, 0"); A("s_cbranch_scc1 L_nowr")
        A(f"s_lshl_b32 s31, s16, 9"); A(f"v_lshl_add_u32 v6, v6, 4, s31")
        A(f"ds_write_b128 v6, v[12:15] offset:{REDL}")
        A("s_waitcnt lgkmcnt(0)"); A("s_barrier"); A("s_branch L_other")
        A("L_nowr:")
        A(f"s_lshl_b32 s31, s16, 9"); A(f"v_lshl_add_u32 v6, v6, 4, s31")
        A("s_barrier")
        for q in range(1,Q): A(f"ds_read_b128 v[{20+4*q}:{23+4*q}], v6 offset:{REDL+q*3*512}")
        for q in range(1,Q):
            A(f"s_waitcnt lgkmcnt({Q-1-q})")
            A(f"v_add_f32 v12, v12, v{20+4*q}"); A(f"v_add_f32 v13, v13, v{21+4*q}"); A(f"v_pk_max_i16 v14, v14, v{22+4*q}")
    A("s_mov_b32 exec_lo, 0x00ff00ff"); A("s_mov_b32 exec_hi, 0x00ff00ff")
    A(f"buffer_store_dwordx4 v[12:15], v7, s[40:43], s30 offen {pst}")
    A("s_mov_b64 exec, -1")
    st(3)
    if Q==1: A("s_barrier")
    def reducer():
        A("s_lshl_b32 s30, s2, 12"); A(f"s_add_u32 s30, s30, {INBOX}"); A("s_mov_b32 s31, 0")
        A("L_poll1:")
        for i in range(4): A(f"buffer_load_dwordx4 v[{24+4*i}:{27+4*i}], v4, s[40:43], s30 offen offset:{1024*i} {pf1}")
        A("s_add_u32 s31, s31, 1"); A(f"s_cmp_gt_u32 s31, {0 if stop else 0x80000}"); A("s_cbranch_scc1 L_poll1x")
        A("s_waitcnt vmcnt(0)")
        A("v_cmp_eq_u32 vcc, s34, v27"); A("v_cmp_eq_u32 s[44:45], s34, v31"); A("v_cmp_eq_u32 s[46:47], s34, v35"); A("v_cmp_eq_u32 s[48:49], s34, v39")
        A("s_and_b64 vcc, vcc, s[44:45]"); A("s_and_b64 s[46:47], s[46:47], s[48:49]"); A("s_and_b64 vcc, vcc, s[46:47]")
        A("s_cmp_eq_u64 vcc, -1"); A("s_cbranch_scc0 L_poll1")
        A("L_poll1x:"); A("s_waitcnt vmcnt(0)")
        st(8)
        A("v_add_f32 v24, v24, v28"); A("v_add_f32 v25, v25, v29"); A("v_pk_max_i16 v26, v26, v30")
        A("v_add_f32 v32, v32, v36"); A("v_add_f32 v33, v33, v37"); A("v_pk_max_i16 v34, v34, v38")
        A("v_pk_max_i16 v26, v26, v34"); A("v_add_f32 v24, v24, v32"); A("v_add_f32 v25, v25, v33")
        A("v_lshlrev_b32 v27, 16, v26")
        for m in ("row_ror:8 row_mask:0xf","row_ror:4 row_mask:0xf","row_ror:2 row_mask:0xf","row_ror:1 row_mask:0xf","row_bcast:15 row_mask:0xa","row_bcast:31 row_mask:0xc"):
            A(f"v_max_i32_dpp v26, v26, v26 {m} bank_mask:0xf"); A(f"v_add_f32_dpp v24, v24, v24 {m} bank_mask:0xf")
            A(f"v_add_f32_dpp v25, v25, v25 {m} bank_mask:0xf"); A(f"v_max_i32_dpp v27, v27, v27 {m} bank_mask:0xf")
        A("s_mov_b32 s30, 0x07060302"); A("s_mov_b32 s31, 0x7fff7fff")
        A("v_mul_f32 v24, 0x37a72f05, v24"); A("v_mul_f32 v25, 0x37a72f05, v25")
        A("v_perm_b32 v26, v26, v27, s30")
        A("v_and_b32 v5, 15, v0")
        A("v_pk_ashrrev_i16 v27, 15, v26 op_sel_hi:[0,1]")
        A("v_cvt_pk_bf16_f32 v24, v24, v25")
        A("v_and_b32 v27, s31, v27")
        A(f"v_mul_u32_u24 v5, {repstride}, v5")
        A("v_xor_b32 v25, v26, v27"); A("v_mov_b32 v26, s34"); A("v_mov_b32 v27, s34")
        A("s_lshl_b32 s30, s2, 4"); A(f"s_add_u32 s30, s30, {OUT2}")
        A("s_mov_b32 exec_lo, 0"); A(f"s_mov_b32 exec_hi, {hex(((1<<NREP)-1)<<16)}")
        A(f"buffer_store_dwordx4 v[24:27], v5, s[40:43], s30 offen {pst}")
        A("s_mov_b64 exec, -1")
        st(9)
    if Q==1:
        A("s_cmp_ge_u32 s2, 96"); A("s_cbranch_scc1 L_nored"); A("s_cmp_lg_u32 s16, 0"); A("s_cbranch_scc1 L_nored")
        reducer(); A("L_nored:")
    A("v_bfe_u32 v5, v0, 2, 2"); A("v_lshrrev_b32 v6, 4, v0"); A("v_and_b32 v7, 3, v0")
    A("v_lshl_add_u32 v24, v6, 3, v5"); A("v_mul_u32_u24 v24, 96, v24"); A("v_lshl_add_u32 v24, v7, 3, v24")
    for t in range(3):
        for kb in range(6):
            for h in range(2):
                r=A1+(t*6+kb)*4+2*h
                A(f"ds_read_b64_tr_b16 v[{r}:{r+1}], v24 offset:{W1L+(32*kb+4*h)*96+32*t}")
    A("v_lshl_add_u32 v25, v6, 2, v5"); A("v_mul_u32_u24 v25, 384, v25"); A("v_lshl_add_u32 v25, v7, 3, v25")
    A("s_lshl_b32 s30, s18, 7"); A("v_add_u32 v25, s30, v25")
    for t in range(4):
        for ht in range(3):
            r=B2+t*4+2*ht if ht<2 else B2+16+2*t
            A(f"ds_read_b64_tr_b16 v[{r}:{r+1}], v25 offset:{W2L+16*ht*384+32*t}")
    A(f"s_mul_i32 s30, s18, 768"); A("v_lshl_add_u32 v5, v0, 2, s30")
    A("v_and_b32 v7, 1, v0"); A("v_mul_u32_u24 v7, 384, v7"); A("v_lshl_add_u32 v7, v6, 4, v7"); A("v_add_u32 v7, s30, v7")
    A(f"s_and_b32 s30, s2, {NREP-1}"); A(f"s_mul_i32 s30, s30, {repstride}"); A(f"s_add_u32 s30, s30, {OUT2}"); A("s_mov_b32 s31, 0")
    A("v_and_b32 v2, 31, v0"); A("v_lshlrev_b32 v2, 4, v2")
    A("s_mov_b32 s50, 0xffff0000"); A("s_mov_b32 s51, 0xffff0000"); A("s_mov_b32 s52, 0"); A("s_mov_b32 s53, -1")
    A("s_waitcnt lgkmcnt(0)")
    A("L_poll2:")
    A(f"buffer_load_dwordx4 v[16:19], v4, s[40:43], s30 offen {pf2}")
    A(f"buffer_load_dwordx4 v[20:23], v2, s[40:43], s30 offen offset:1024 {pf2}")
    A("s_add_u32 s31, s31, 1"); A(f"s_cmp_gt_u32 s31, {0 if stop else 0x80000}"); A("s_cbranch_scc1 L_poll2x")
    A("s_waitcnt vmcnt(0)")
    A("v_cmp_eq_u32 vcc, s34, v18"); A("v_cmp_eq_u32 s[44:45], s34, v22"); A("s_and_b64 vcc, vcc, s[44:45]")
    A("s_cmp_eq_u64 vcc, -1"); A("s_cbranch_scc0 L_poll2")
    A("L_poll2x:"); A("s_waitcnt vmcnt(0)")
    st(4)
    A(f"v_add_u32 v6, {VECL}, v5")
    A(f"ds_write2_b32 v6, v16, v17 offset0:0 offset1:96")
    A("s_mov_b64 exec, 0xffffffff")
    A(f"ds_write2_b32 v6, v20, v21 offset0:64 offset1:160")
    A("s_mov_b64 exec, -1")
    for kb in range(6): A(f"ds_read_b128 v[{24+4*kb}:{27+4*kb}], v7 offset:{VECL+64*kb}")
    def g1(t,kb):
        d=8+4*t; a=A1+(t*6+kb)*4
        A(f"v_mfma_f32_16x16x32_bf16 v[{d}:{d+3}], v[{a}:{a+3}], v[{24+4*kb}:{27+4*kb}], "+("0" if kb==0 else f"v[{d}:{d+3}]"))
    def relu(t,dst):
        d=8+4*t
        for r in range(4): A(f"v_maximum3_f32 v{d+r}, v{d+r}, 0, 0")
        A(f"v_cvt_pk_bf16_f32 v{dst}, v{d}, v{d+1}"); A(f"v_cvt_pk_bf16_f32 v{dst+1}, v{d+2}, v{d+3}")
    for kb in range(6):
        A(f"s_waitcnt lgkmcnt({5-kb})"); g1(0,kb)
    for kb in range(6): g1(1,kb)
    g1(2,0); g1(2,1); relu(0,20); g1(2,2); g1(2,3); relu(1,22); g1(2,4); g1(2,5)
    for t in range(4): A(f"v_mfma_f32_16x16x32_bf16 v[{24+4*t}:{27+4*t}], v[20:23], v[{B2+4*t}:{B2+4*t+3}], 0")
    A("s_nop 3"); relu(2,8); A("s_nop 1")
    for t in range(4): A(f"v_mfma_f32_16x16x16_bf16 v[{24+4*t}:{27+4*t}], v[8:9], v[{B2+16+2*t}:{B2+17+2*t}], v[{24+4*t}:{27+4*t}]")
    A("s_nop 5")
    A("v_cndmask_b32 v24, v24, v28, s[50:51]"); A("v_cndmask_b32 v25, v25, v29, s[50:51]")
    A("v_cndmask_b32 v32, v32, v36, s[50:51]"); A("v_cndmask_b32 v33, v33, v37, s[50:51]")
    A("v_cndmask_b32 v24, v24, v32, s[52:53]"); A("v_cndmask_b32 v25, v25, v33, s[52:53]")
    A("v_cvt_pk_bf16_f32 v24, v24, v25")
    A("v_lshlrev_b32 v25, 16, v24"); A("v_and_b32 v24, 0xffff0000, v24"); A("v_add_f32 v24, v24, v25")
    A("v_cvt_pk_bf16_f32 v24, v24, v24"); A("v_and_b32 v24, 0xffff0000, v24")
    A("v_mul_f32 v24, 0xbfb8aa3b, v24"); A("v_exp_f32 v24, v24"); A("s_lshl_b32 s30, s18, 8")
    A("v_add_f32 v24, 1.0, v24"); A("v_rcp_f32 v24, v24"); A("v_lshl_add_u32 v6, v0, 2, s30")
    A("v_cvt_pk_bf16_f32 v24, v24, v24"); A("v_and_b32 v24, 0xffff0000, v24")
    A(f"ds_write_b32 v6, v24 offset:{SCL}")
    A("s_or_b32 s31, s2, s16"); A("s_cmp_lg_u32 s31, 0"); A("s_cbranch_scc1 L_noep")
    A("v_mov_b32 v6, s34"); A("v_mov_b32 v7, 0"); A("s_mov_b64 exec, 1"); A("buffer_store_dword v6, v7, s[40:43], 0 offen sc1"); A("s_mov_b64 exec, -1")
    A("L_noep:")
    if Q>1:
        A("s_waitcnt lgkmcnt(0)"); A("s_branch L_final")
        A("L_other:")
        A("s_cmp_ge_u32 s2, 96"); A("s_cbranch_scc1 L_final"); A("s_cmp_lg_u32 s16, 3"); A("s_cbranch_scc1 L_final")
        reducer()
        A("L_final:")
        A("s_barrier")
    st(5)
    A("s_lshl_b32 s30, s18, 8"); A("v_lshl_add_u32 v6, v3, 5, s30")
    A(f"ds_read_b128 v[8:11], v6 offset:{SCL}"); A(f"ds_read_b128 v[12:15], v6 offset:{SCL+16}")
    A("s_mov_b32 s31, 0xffff0000")
    def xstore(j,so=None,first=False):
        r=D0+4*j; so=j*step if so is None else so
        T=16+8*(j%2)
        for d in range(4):
            A(f"v_lshlrev_b32 v{T+2*d}, 16, v{r+d}"); A(f"v_and_b32 v{T+2*d+1}, s31, v{r+d}")
        if first: A("s_waitcnt lgkmcnt(0)")
        for d in range(4): A(f"v_pk_mul_f32 v[{T+2*d}:{T+2*d+1}], v[{T+2*d}:{T+2*d+1}], v[{8+2*d}:{9+2*d}]")
        A(f"s_mov_b32 s30, {so}")
        for d in range(4): A(f"v_cvt_pk_bf16_f32 v{r+d}, v{T+2*d}, v{T+2*d+1}")
        A(f"buffer_store_dwordx4 v[{r}:{r+3}], v1, s[24:27], s30 offen {sf}")
    for j in range(nfull): xstore(j,first=(j==0))
    A(f"s_cmp_lg_u32 s17, {Q-1}"); A("s_cbranch_scc1 L_notail2")
    xstore(nfull, nfull*step-(Q-1)*3072)
    A("L_notail2:")
    if cal is not None:
        st(6); A("s_waitcnt vmcnt(0)"); st(7); A("s_cmp_lg_u32 s16, 0"); A("s_cbranch_scc1 L_end")
        A("s_waitcnt lgkmcnt(0)"); A("s_mov_b32 s31, 0")
        A("L_cal:"); A("s_memrealtime s[46:47]"); A("s_add_u32 s31, s31, 1"); A("s_cmp_gt_u32 s31, 100000"); A("s_cbranch_scc1 L_end")
        A("s_waitcnt lgkmcnt(0)"); A(f"s_sub_u32 s46, s46, s{60+2*cal}"); A("s_cmp_lt_u32 s46, 4000"); A("s_cbranch_scc1 L_cal")
    if diag:
        st(6); A("s_waitcnt vmcnt(0)"); st(7); A("s_waitcnt lgkmcnt(0)")
        A("s_lshl_b32 s30, s2, 7"); A("s_add_u32 s30, s30, 0x8000000"); A("v_mov_b32 v2, s30"); A("s_mov_b64 exec, 1")
        def ws(ks):
            for k in ks:
                A(f"v_mov_b32 v4, s{60+2*k}"); A(f"v_mov_b32 v5, s{61+2*k}"); A(f"global_store_dwordx2 v2, v[4:5], s[14:15] offset:{8*k}"); A("s_nop 1")
        A("s_cmp_lg_u32 s16, 0"); A("s_cbranch_scc1 L_d1"); ws(range(8)); A("L_d1:")
        A(f"s_cmp_lg_u32 s16, {3 if Q>1 else 0}"); A("s_cbranch_scc1 L_end"); A("s_cmp_ge_u32 s2, 96"); A("s_cbranch_scc1 L_end"); ws((8,9))
    A("L_end:"); A("s_endpgm")
    vg=(NV+7)//8*8
    body="\n".join(l if l.endswith(':') else "    "+l for l in L)
    asm=HEAD+f"""; @launch grid=(256,1,1) block=({block},1,1) lds={LDS}
.amdgcn_target "amdgcn-amd-amdhsa--gfx950"
.text
.globl {KN}
.p2align 8
.type {KN},@function
{KN}:
{body}
.section .rodata,"a"
.p2align 6
.amdhsa_kernel {KN}
  .amdhsa_next_free_vgpr {vg}
  .amdhsa_next_free_sgpr 96
  .amdhsa_accum_offset {vg}
  .amdhsa_group_segment_fixed_size 0
  .amdhsa_kernarg_size 48
  .amdhsa_user_sgpr_count 2
  .amdhsa_user_sgpr_kernarg_segment_ptr 1
  .amdhsa_system_sgpr_workgroup_id_x 1
  .amdhsa_float_denorm_mode_32 3
.end_amdhsa_kernel
"""
    return asm,block,LDS,vg
specs=[]
def add(name,g=None,**kw):
    a,b,l,vg=(g or gen)(**kw); build(a,name); specs.append(f"dev/{name}.co:{KN}:256:{b}:{l}"+(':n' if kw.get('now') or kw.get('stop') or kw.get('nc') else ''))
def fin():
    open('specs.txt','w').write(' '.join(specs)); print(' '.join('"'+s.split(':')[0]+'",' for s in specs))
if __name__=='__main__':
    add('v1q2d',Q=2,diag=True); add('v1q1d',Q=1,diag=True); add('v1q2',Q=2); add('v1q1',Q=1)
    fin()
```

```python
from build import build, KN
import gen1
from gen1 import HEAD, add, fin
def wrap(L,block,LDS,NV,sg=96):
    vg=(NV+7)//8*8
    body="\n".join(l if l.endswith(':') else "    "+l for l in L)
    asm=HEAD+f"""; @launch grid=(256,1,1) block=({block},1,1) lds={LDS}
.amdgcn_target "amdgcn-amd-amdhsa--gfx950"
.text
.globl {KN}
.p2align 8
.type {KN},@function
{KN}:
{body}
.section .rodata,"a"
.p2align 6
.amdhsa_kernel {KN}
  .amdhsa_next_free_vgpr {vg}
  .amdhsa_next_free_sgpr {sg}
  .amdhsa_accum_offset {vg}
  .amdhsa_group_segment_fixed_size 0
  .amdhsa_kernarg_size 48
  .amdhsa_user_sgpr_count 2
  .amdhsa_user_sgpr_kernarg_segment_ptr 1
  .amdhsa_system_sgpr_workgroup_id_x 1
  .amdhsa_float_denorm_mode_32 3
.end_amdhsa_kernel
"""
    return asm,block,LDS,vg
def addprobe(A,st,probe,sw):
    a,fa,seta,b,fb,setb=probe
    A("s_waitcnt vmcnt(0)"); st(7); A("s_waitcnt lgkmcnt(0)")
    A(f"s_cmp_lg_u32 s16, {sw}"); A("s_cbranch_scc1 L_end")
    A(f"v_mov_b32 v8, s{60+2*a}"); A(f"v_mov_b32 v9, s{60+2*b}"); A("v_mov_b32 v10, s60"); A("v_mov_b32 v11, s34")
    A("s_lshl_b32 s30, s2, 4"); A("s_add_u32 s30, s30, 0x180000"); A("v_mov_b32 v2, 0"); A("s_mov_b64 exec, 1")
    A("buffer_store_dwordx4 v[8:11], v2, s[40:43], s30 offen sc1"); A("s_mov_b64 exec, -1")
    A("s_cmp_lg_u32 s2, 0"); A("s_cbranch_scc1 L_end")
    A("s_mov_b32 s30, 0x180000"); A("s_mov_b32 s31, 0"); A("L_pp:")
    for i in range(4): A(f"buffer_load_dwordx4 v[{24+4*i}:{27+4*i}], v4, s[40:43], s30 offen offset:{1024*i} sc1")
    A("s_add_u32 s31, s31, 1"); A("s_cmp_gt_u32 s31, 10000"); A("s_cbranch_scc1 L_end"); A("s_waitcnt vmcnt(0)")
    A("v_cmp_ne_u32 vcc, s34, v27"); A("v_cmp_ne_u32 s[44:45], s34, v31"); A("v_cmp_ne_u32 s[46:47], s34, v35"); A("v_cmp_ne_u32 s[48:49], s34, v39")
    A("s_or_b64 vcc, vcc, s[44:45]"); A("s_or_b64 s[46:47], s[46:47], s[48:49]"); A("s_or_b64 vcc, vcc, s[46:47]"); A("s_cbranch_scc1 L_pp")
    for r,f,S,d in ((24,fa,seta,44),(25,fb,setb,45),(26,'max',range(8),48)):
        for i in (4,8,12): A(f"v_{f}_u32 v{r}, v{r}, v{r+i}")
        A("s_nop 1"); first=True
        for l in range(64):
            if l%8 not in S: continue
            if first: A(f"v_readlane_b32 s{d}, v{r}, {l}"); first=False
            else: A(f"v_readlane_b32 s32, v{r}, {l}"); A(f"s_{f}_u32 s{d}, s{d}, s32")
    A("s_sub_u32 s45, s45, s44"); A("s_mul_i32 s45, s45, 20"); A("s_add_u32 s45, s45, 2000"); A("s_min_u32 s45, s45, 40000")
    A("s_mov_b32 s31, 0")
    A("L_cal:"); A("s_memrealtime s[46:47]"); A("s_add_u32 s31, s31, 1"); A("s_cmp_gt_u32 s31, 100000"); A("s_cbranch_scc1 L_end")
    A("s_waitcnt lgkmcnt(0)"); A("s_sub_u32 s46, s46, s48"); A("s_cmp_lt_u32 s46, s45"); A("s_cbranch_scc1 L_cal")
def gen(Q=2, lf='nt', sf='sc1 nt', diag=False, p1='sc1', pf1='sc1', pf2='sc1', p2='sc1', stop=0, nc=0, mask2=False, rep=1, cpf=0, warm=0, fb=0, fb2=0, clean=0, sw=0, xmap=0, otlb=0, cal=None, probe=None, dry=0, wl=0, sw2=0, rb=0, prio=0, m1=0, m2=0, half=0, dly=0, rf=0, sf2=None, nsf=0):
    NW=(5 if dry==1 else 4) if Q==1 else 3*Q
    block=NW*64; nfull=24//Q; step=3072*Q
    L=[]; A=L.append
    W1L,W2L=0,18432; REDL=36864; VECL=REDL+NW*512; SCL=VECL+768; LDS=SCL+768
    INBOX=4096; OUT2=0x80000; LIM=0 if stop else 0x80000
    D0=48; ND=4*(nfull+1); A1=D0+ND; B2=A1+72; NV=B2+24
    def st(k):
        if diag or (cal and cal[1]==k) or (probe and k in (0,probe[0],probe[3])): A(f"s_memrealtime s[{60+2*k}:{61+2*k}]")
    st(0)
    A("s_cmp_ge_u32 s2, 256"); A("s_cbranch_scc1 L_end")
    A("s_load_dwordx8 s[4:11], s[0:1], 0"); A("s_load_dwordx2 s[40:41], s[0:1], 40")
    A("v_lshrrev_b32 v1, 6, v0"); A("v_and_b32 v0, 63, v0")
    A("v_readfirstlane_b32 s16, v1")
    if cpf:
        A(f"s_cmp_lg_u32 s16, {4 if dry==1 else 3}"); A("s_cbranch_scc1 L_nocpf")
        A("s_getpc_b64 s[44:45]"); A("L_pc:"); A(f"v_lshlrev_b32 v6, {6 if cpf==2 else 7}, v0")
        for i in range(cpf):
            if i: A("v_add_u32 v6, 4096, v6")
            A("v_min_u32 v5, L_codeend-L_pc-4, v6"); A("v_mov_b32 v9, s45"); A("v_add_co_u32 v8, vcc, s44, v5"); A("v_addc_co_u32 v9, vcc, 0, v9, vcc")
            A(f"global_load_dword v{44+i}, v[8:9], off")
        A("L_nocpf:")
    if xmap:
        A("s_and_b32 s12, s2, 7"); A("s_lshr_b32 s13, s2, 3"); A("s_lshl_b32 s3, s12, 5"); A("s_add_u32 s3, s3, s13"); A("s_mul_i32 s3, s3, 75264")
    else: A("s_mul_i32 s3, s2, 75264")
    A("v_lshrrev_b32 v2, 3, v0"); A("v_and_b32 v3, 7, v0")
    A("s_mul_i32 s17, s16, 0x5556"); A("s_lshr_b32 s17, s17, 16")
    A("s_mul_i32 s18, s17, 3"); A("s_sub_u32 s18, s16, s18")
    A("s_mul_i32 s19, s17, 3072"); A("s_lshl_b32 s30, s18, 7"); A("s_add_u32 s19, s19, s30")
    A("v_mul_u32_u24 v2, 384, v2"); A("v_lshl_add_u32 v2, v3, 4, v2"); A("v_add_u32 v1, s19, v2")
    A("s_mov_b32 s22, 75264"); A("s_mov_b32 s23, 0x20000")
    A("s_mov_b32 s38, 18432"); A("s_mov_b32 s39, 0x20000")
    A("s_mov_b32 s42, 0x200000"); A("s_mov_b32 s43, 0x20000")
    A("v_lshlrev_b32 v4, 4, v0")
    A("s_and_b32 s12, s2, 7"); A("s_lshr_b32 s13, s2, 3")
    A("s_waitcnt lgkmcnt(0)")
    A("s_load_dword s34, s[40:41], 0")
    A("s_add_u32 s20, s4, s3"); A("s_addc_u32 s21, s5, 0")
    def tag():
        A("s_waitcnt lgkmcnt(0)"); A("s_mul_i32 s34, s34, 1664525"); A("s_add_u32 s34, s34, 1013904223")
    def dowarm():
        A("s_cmp_ge_u32 s13, 12"); A("s_cbranch_scc1 L_nowarm")
        A("s_mul_i32 s30, s12, 12"); A("s_add_u32 s30, s30, s13"); A(f"s_lshl_b32 s31, s30, {10+half}"); A("s_lshl_b32 s30, s30, 12")
        A(f"s_add_u32 s30, s30, {INBOX}"); A(f"s_add_u32 s31, s31, {OUT2}"); A("v_lshlrev_b32 v5, 6, v0")
        A("buffer_load_dword v46, v5, s[40:43], s30 offen sc1")
        if warm>1: A(f"v_lshlrev_b32 v5, {4+half}, v0"); A("buffer_load_dword v47, v5, s[40:43], s31 offen "+("sc1" if warm==2 else "sc1 nt"))
        A("L_nowarm:")
    if Q==1:
        A("s_cmp_ge_u32 s16, 3"); A("s_cbranch_scc1 L_helper")
    else:
        if warm: A("s_cmp_lg_u32 s16, 3"); A("s_cbranch_scc1 L_nowarm"); dowarm()
        nwl=36//NW; h=NW//2
        A(f"s_cmp_lt_u32 s16, {h}"); A("s_cselect_b32 s36, s6, s8"); A("s_cselect_b32 s37, s7, s9")
        A(f"s_cselect_b32 s31, 0, {h}"); A("s_sub_u32 s31, s16, s31"); A(f"s_mul_i32 s31, s31, {nwl*1024}")
        A(f"s_mul_i32 s32, s16, {nwl*1024}")
        for i in range(nwl):
            if i%4==0:
                A(f"s_add_u32 s33, s32, {i*1024}"); A("s_mov_b32 m0, s33"); A(f"s_add_u32 s30, s31, {i*1024}")
            A(f"buffer_load_dwordx4 v4, s[36:39], s30 offen offset:{(i%4)*1024} lds")
    def xload(j,so=None):
        r=D0+4*j; so=j*step if so is None else so
        if so<4096: A(f"buffer_load_dwordx4 v[{r}:{r+3}], v1, s[20:23], 0 offen offset:{so} {lf}")
        else:
            if Q==1 and j%2==1: A(f"buffer_load_dwordx4 v[{r}:{r+3}], v1, s[20:23], s30 offen offset:3072 {lf}"); return
            A(f"s_mov_b32 s30, {so}"); A(f"buffer_load_dwordx4 v[{r}:{r+3}], v1, s[20:23], s30 offen {lf}")
    for j in range(nfull):
        xload(j)
    if Q>1: A(f"s_cmp_lg_u32 s17, {Q-1}"); A("s_cbranch_scc1 L_notail")
    xload(nfull, nfull*step-(Q-1)*3072)
    if dry: A("s_mov_b64 s[54:55], -1"); A("s_mov_b32 s56, 0x00ff00ff"); A("s_mov_b32 s57, s56"); A("s_mov_b64 s[58:59], 0xffffffff")
    A("L_notail:")
    st(1)
    A("s_add_u32 s24, s10, s3"); A("s_addc_u32 s25, s11, 0"); A("s_mov_b32 s26, 75264"); A("s_mov_b32 s27, 0x20000")
    A("v_and_b32 v5, 1, v0"); A("v_lshlrev_b32 v5, 4, v5"); A("v_mov_b32 v6, 0x3f80"); A("v_lshlrev_b32 v5, v5, v6")
    A("v_bfe_u32 v6, v0, 2, 2")
    for d in range(4):
        A(f"v_cmp_eq_u32 vcc, {d}, v6"); A("s_nop 1"); A(f"v_cndmask_b32 v{8+d}, 0, v5, vcc")
    A("v_lshrrev_b32 v6, 4, v0"); A("v_lshlrev_b32 v40, 12, v6"); A("v_lshl_add_u32 v40, v3, 4, v40")
    A("s_mul_i32 s35, s12, 12"); A("s_lshl_b32 s30, s18, 2"); A("s_add_u32 s35, s35, s30"); A("s_lshl_b32 s35, s35, 5"); A("s_add_u32 s35, s35, s13")
    A("s_lshl_b32 s35, s35, 7"); A(f"s_add_u32 s35, s35, {INBOX}")
    if sw2:
        A("v_lshlrev_b32 v41, 5, v6"); A("v_xor_b32 v41, v41, v1")
    if Q>1:
        A("v_lshl_add_u32 v6, v6, 3, v3"); A("s_lshl_b32 s31, s16, 9"); A("v_lshl_add_u32 v6, v6, 4, s31")
    tag()
    def acc(j,first):
        r=D0+4*j
        A(f"v_mfma_f32_16x16x32_bf16 v[12:15], v[8:11], v[{r}:{r+3}], "+("0" if first else "v[12:15]"))
    def mx(j,j2=None):
        r=D0+4*j
        for d in range(4):
            if j2 is not None:
                r2=D0+4*j2
                A(f"v_pk_max_i16 v{16+d}, v{r+d}, v{r2+d}"); A(f"v_pk_min_u16 v{20+d}, v{r+d}, v{r2+d}")
            else:
                A(f"v_pk_max_i16 v{16+d}, v{16+d}, v{r+d}"); A(f"v_pk_min_u16 v{20+d}, v{20+d}, v{r+d}")
    def one(j,out):
        A(f"s_waitcnt vmcnt({out})"); acc(j,j==0)
        if j==0: return
        if j==nfull: A("s_mov_b64 exec, "+("s[58:59]" if dry else "0xffffffff"))
        mx(j,0 if j==1 else None)
        if j==nfull: A("s_mov_b64 exec, "+("s[54:55]" if dry else "-1"))
    if Q==1:
        for j in range(nfull+1): one(j,nfull-j)
    else:
        for j in range(nfull): one(j,nfull-1-j)
        A(f"s_cmp_lg_u32 s17, {Q-1}"); A("s_cbranch_scc1 L_acc1"); one(nfull,0); A("L_acc1:")
    st(2)
    A("s_mov_b32 s30, 0x7fff7fff")
    for d in range(4):
        A(f"v_pk_ashrrev_i16 v{24+d}, 15, v{16+d} op_sel_hi:[0,1]"); A(f"v_xor_b32 v{20+d}, s30, v{20+d}")
    for d in (0,2,1,3): A(f"v_bfi_b32 v{16+d}, v{24+d}, v{20+d}, v{16+d}")
    A("v_permlane32_swap_b32 v16, v18")
    A("v_add_f32_dpp v12, v12, v12 row_ror:8 row_mask:0xf bank_mask:0xf")
    A("v_permlane32_swap_b32 v17, v19")
    A("v_pk_max_i16 v16, v16, v18"); A("v_pk_max_i16 v17, v17, v19")
    A("v_add_f32_dpp v13, v13, v13 row_ror:8 row_mask:0xf bank_mask:0xf")
    A("v_mov_b32 v15, s34")
    A("v_permlane16_swap_b32 v16, v17")
    A("v_pk_max_i16 v16, v16, v17")
    A("s_nop 1")
    A("v_mov_b32_dpp v17, v16 row_ror:8 row_mask:0xf bank_mask:0xf")
    A("v_pk_max_i16 v14, v16, v17")
    if Q>1:
        A("s_cmp_eq_u32 s17, 0"); A("s_cbranch_scc1 L_nowr")
        A(f"ds_write_b128 v6, v[12:15] offset:{REDL}")
        A("s_waitcnt lgkmcnt(0)"); A("s_barrier"); A("s_branch L_other")
        A("L_nowr:")
        A("s_barrier")
        for q in range(1,Q): A(f"ds_read_b128 v[{20+4*q}:{23+4*q}], v6 offset:{REDL+q*3*512}")
        for q in range(1,Q):
            A(f"s_waitcnt lgkmcnt({Q-1-q})")
            A(f"v_add_f32 v12, v12, v{20+4*q}"); A(f"v_add_f32 v13, v13, v{21+4*q}"); A(f"v_pk_max_i16 v14, v14, v{22+4*q}")
    if dry: A("s_mov_b64 exec, s[56:57]")
    else: A("s_mov_b32 exec_lo, 0x00ff00ff"); A("s_mov_b32 exec_hi, 0x00ff00ff")
    A(f"buffer_store_dwordx4 v[12:15], v40, s[40:43], s35 offen {p1}")
    if fb: A("s_add_u32 s35, s35, 0x100000")
    if fb and not fb2: A("buffer_store_dwordx4 v[12:15], v40, s[40:43], s35 offen sc1")
    A("s_mov_b64 exec, "+("s[54:55]" if dry else "-1"))
    st(3)
    def wdma():
        A("s_mul_i32 s32, s18, 6144")
        for lo,base in ((6,W1L),(8,W2L)):
            A(f"s_mov_b32 s36, s{lo}"); A(f"s_mov_b32 s37, s{lo+1}")
            if sw2 and lo==8:
                for i in range(6):
                    A(f"s_add_u32 m0, s32, {base+i*1024}"); A(f"s_mov_b32 s30, {i*3072}")
                    A(f"buffer_load_dwordx4 v41, s[36:39], s30 offen lds")
                break
            for i in range(6):
                if i%4==0: A(f"s_add_u32 m0, s32, {base+i*1024}"); A(f"s_add_u32 s30, s32, {i*1024}")
                A(f"buffer_load_dwordx4 v4, s[36:39], s30 offen offset:{(i%4)*1024} lds")
    if dry: A("s_cbranch_execz L_nb1")
    if wl==2: wdma()
    if Q==1: A("s_barrier")
    A("L_nb1:"); st(13)
    if wl==1: wdma()
    def pollm(name,regs,vaddr,fl,offs,skip):
        M=["vcc","s[44:45]","s[46:47]","s[48:49]"]
        A("s_mov_b32 s31, 0")
        for m in M: A(f"s_mov_b64 {m}, -1")
        A(f"{name}:")
        for i,(r,o) in enumerate(zip(regs,offs)):
            A(f"s_mov_b64 exec, {M[i]}")
            if skip: A(f"s_cbranch_execz {name}_{i}")
            A(f"buffer_load_dwordx4 v[{r}:{r+3}], {vaddr}, s[40:43], s30 offen offset:{o} {fl}")
            if skip: A(f"{name}_{i}:")
        A("s_mov_b64 exec, -1")
        A("s_add_u32 s31, s31, 1"); A(f"s_cmp_gt_u32 s31, {LIM}"); A(f"s_cbranch_scc1 {name}x")
        if fb and name=="L_poll1": A(f"s_cmp_ge_u32 s31, {fb}"); A("s_cbranch_scc1 L_fb1"); A("L_fb1r:")
        if fb2 and name=="L_poll2": A(f"s_cmp_eq_u32 s31, {fb2}"); A("s_cbranch_scc1 L_repub")
        A("s_waitcnt vmcnt(0)")
        for i in range(4): A(f"v_cmp_ne_u32 {M[i]}, s34, v{regs[i]+3}")
        A("s_or_b64 s[54:55], vcc, s[44:45]"); A("s_or_b64 s[56:57], s[46:47], s[48:49]")
        A("s_or_b64 s[54:55], s[54:55], s[56:57]"); A(f"s_cbranch_scc1 {name}")
        A(f"{name}x:"); A("s_waitcnt vmcnt(0)")
    def poll(name,regs,vaddr,fl,offs):
        m=m1 if name=="L_poll1" else m2
        if m: return pollm(name,regs,vaddr,fl,offs,m==2)
        A("s_mov_b32 s31, 0")
        A(f"{name}:")
        for r,o in zip(regs,offs): A(f"buffer_load_dwordx4 v[{r}:{r+3}], {vaddr}, s[40:43], s30 offen offset:{o} {fl}")
        A("s_add_u32 s31, s31, 1"); A(f"s_cmp_gt_u32 s31, {LIM}"); A(f"s_cbranch_scc1 {name}x")
        if fb and name=="L_poll1": A(f"s_cmp_ge_u32 s31, {fb}"); A("s_cbranch_scc1 L_fb1"); A("L_fb1r:")
        if fb2 and name=="L_poll2": A(f"s_cmp_eq_u32 s31, {fb2}"); A("s_cbranch_scc1 L_repub")
        A("s_waitcnt vmcnt(2)")
        A(f"v_cmp_ne_u32 vcc, s34, v{regs[0]+3}"); A(f"v_cmp_ne_u32 s[44:45], s34, v{regs[1]+3}")
        A("s_waitcnt vmcnt(0)")
        A(f"v_cmp_ne_u32 s[46:47], s34, v{regs[2]+3}"); A(f"v_cmp_ne_u32 s[48:49], s34, v{regs[3]+3}")
        A("s_or_b64 vcc, vcc, s[44:45]"); A("s_or_b64 s[46:47], s[46:47], s[48:49]")
        if mask2:
            A("s_or_b64 exec, vcc, s[46:47]"); A(f"s_cbranch_scc1 {name}")
        else:
            A("s_or_b64 vcc, vcc, s[46:47]"); A(f"s_cbranch_scc1 {name}")
        A(f"{name}x:"); A("s_waitcnt vmcnt(0)")
        if mask2: A("s_mov_b64 exec, -1")
    def comb4(b):
        A(f"v_pk_max_i16 v{b+2}, v{b+2}, v{b+6}"); A(f"v_pk_max_i16 v{b+10}, v{b+10}, v{b+14}")
        A(f"v_pk_add_f32 v[{b}:{b+1}], v[{b}:{b+1}], v[{b+4}:{b+5}]"); A(f"v_pk_add_f32 v[{b+8}:{b+9}], v[{b+8}:{b+9}], v[{b+12}:{b+13}]")
        A(f"v_pk_max_i16 v{b+2}, v{b+2}, v{b+10}"); A(f"v_pk_add_f32 v[{b}:{b+1}], v[{b}:{b+1}], v[{b+8}:{b+9}]")
    def reducer():
        A("s_mul_i32 s30, s12, 12"); A("s_add_u32 s30, s30, s13"); A("s_lshl_b32 s30, s30, 12"); A(f"s_add_u32 s30, s30, {INBOX}")
        A("v_lshrrev_b32 v5, 3, v0"); A(f"v_mul_u32_u24 v5, {12288<<half}, v5"); A("v_lshl_add_u32 v5, v3, 4, v5")
        if half: A("v_and_b32 v6, 4, v3"); A("v_lshl_add_u32 v5, v6, 4, v5")
        A(f"s_lshl_b32 s35, s13, {10+half}"); A(f"s_lshl_b32 s31, s12, {7+half}"); A("s_add_u32 s35, s35, s31"); A(f"s_add_u32 s35, s35, {OUT2}")
        poll("L_poll1",[24,28,32,36],"v4",pf1,[0,1024,2048,3072])
        st(8)
        comb4(24)
        A("s_nop 0")
        A("v_mov_b32_dpp v30, v26 row_ror:8 row_mask:0xf bank_mask:0xf")
        A("v_add_f32_dpp v24, v24, v24 row_ror:8 row_mask:0xf bank_mask:0xf"); A("v_add_f32_dpp v25, v25, v25 row_ror:8 row_mask:0xf bank_mask:0xf")
        A("v_pk_max_i16 v26, v26, v30")
        for sw in ("16","32"):
            A("v_mov_b32 v28, v24"); A("v_mov_b32 v29, v25"); A("v_mov_b32 v30, v26")
            A(f"v_permlane{sw}_swap_b32 v24, v28"); A(f"v_permlane{sw}_swap_b32 v25, v29"); A(f"v_permlane{sw}_swap_b32 v26, v30")
            A("v_add_f32 v24, v24, v28"); A("v_add_f32 v25, v25, v29"); A("v_pk_max_i16 v26, v26, v30")
        if not rep: A("s_mov_b64 exec, 0xff")
        A(f"buffer_store_dwordx4 v[24:27], v5, s[40:43], s35 offen {p2}")
        if not rep: A("s_mov_b64 exec, -1")
        st(9)
        if rf:
            A("L_rf:")
            n=3*rf
            A("s_mul_i32 s30, s12, 12288"); A(f"s_lshr_b32 s31, s13, {2+rf}"); A(f"s_mul_i32 s31, s31, {n*1024}"); A("s_add_u32 s30, s30, s31")
            A("s_and_b32 s31, s13, 7"); A("s_lshl_b32 s31, s31, 7"); A("s_add_u32 s30, s30, s31"); A(f"s_add_u32 s30, s30, {OUT2}")
            A("v_lshlrev_b32 v5, 10, v0"); A("v_not_b32 v20, s34"); A("s_mov_b32 s31, 0"); A(f"s_mov_b64 exec, {(1<<n)-1}")
            A("s_barrier")
            A("L_rfl:"); A("buffer_load_dword v20, v5, s[40:43], s30 offen offset:12 sc1")
            A("s_add_u32 s31, s31, 1"); A(f"s_cmp_gt_u32 s31, {LIM}"); A("s_cbranch_scc1 L_rfx")
            A("v_cmp_ne_u32 vcc, s34, v20"); A("s_and_b64 exec, exec, vcc"); A("s_cbranch_scc1 L_rfl")
            A("L_rfx:"); A("s_mov_b64 exec, -1"); A("s_barrier")
            if diag: A("s_cmp_ge_u32 s13, 12"); A("s_cbranch_scc1 L_end")
        elif rb: A(f"s_cmp_ge_u32 s31, {fb}"); A("s_cbranch_scc1 L_rb2"); A("s_barrier"); A("L_rb2:"); A("s_barrier")
    A("v_bfe_u32 v5, v0, 2, 2"); A("v_lshrrev_b32 v6, 4, v0"); A("v_and_b32 v7, 3, v0")
    A("s_lshl_b32 s30, s18, 7")
    def rd1():
        for t in range(3):
            for kb in range(6):
                for h in range(2):
                    r=A1+(t*6+kb)*4+2*h
                    A(f"ds_read_b64_tr_b16 v[{r}:{r+1}], v24 offset:{W1L+(32*kb+(16 if sw2 else 4)*h)*96+32*t}")
    def rd2():
        for t in range(4):
            for ht in range(3):
                r=B2+t*4+2*ht if ht<2 else B2+16+2*t
                if sw2: A(f"ds_read_b64_tr_b16 v[{r}:{r+1}], v{25+t} offset:{W2L+ht*2048}")
                else: A(f"ds_read_b64_tr_b16 v[{r}:{r+1}], v25 offset:{W2L+16*ht*384+32*t}")
    if sw2:
        A("v_lshrrev_b32 v25, 2, v0"); A("v_mul_u32_u24 v24, 96, v25"); A("v_lshl_add_u32 v24, v7, 3, v24")
        A("v_lshlrev_b32 v25, 7, v25"); A("v_lshl_add_u32 v25, v7, 3, v25"); A("v_bfe_u32 v26, v0, 3, 2"); A("v_lshl_add_u32 v25, v26, 5, v25"); A("v_add_u32 v25, s32, v25")
        for t in (1,2,3): A(f"v_xor_b32 v{25+t}, {32*t}, v25")
        A("s_waitcnt vmcnt(0)"); rd2(); A("s_barrier"); st(12); rd1()
    else:
        A("v_lshl_add_u32 v24, v6, 3, v5"); A("v_mul_u32_u24 v24, 96, v24"); A("v_lshl_add_u32 v24, v7, 3, v24")
        if wl: A("s_waitcnt vmcnt(0)"); A("s_barrier"); st(12)
        rd1()
        A("v_lshl_add_u32 v25, v6, 2, v5"); A("v_mul_u32_u24 v25, 384, v25"); A("v_lshl_add_u32 v25, v7, 3, v25"); A("v_add_u32 v25, s30, v25")
        rd2()
    A("v_bfe_u32 v5, v0, 3, 2"); A("v_lshrrev_b32 v2, 5, v0"); A(f"v_lshlrev_b32 v8, {7+half}, v2"); A(f"v_lshl_add_u32 v8, v5, {10+half}, v8"); A("v_lshl_add_u32 v8, v3, 4, v8")
    if half: A("v_and_b32 v9, 4, v3"); A("v_lshl_add_u32 v8, v9, 4, v8")
    A("v_lshl_add_u32 v5, v3, 2, v5"); A("v_lshl_add_u32 v5, v5, 1, v2")
    if sw2:
        A("v_and_b32 v9, 0x23, v5"); A("v_bfe_u32 v10, v5, 2, 2"); A("v_lshl_or_b32 v9, v10, 3, v9"); A("v_bfe_u32 v10, v5, 4, 1"); A("v_lshl_or_b32 v5, v10, 2, v9")
    A("v_lshl_add_u32 v5, v5, 1, s30")
    A("v_and_b32 v7, 1, v0"); A("v_mul_u32_u24 v7, 384, v7"); A("v_lshl_add_u32 v7, v6, 4, v7")
    A(f"s_mul_i32 s30, s12, {(12288<<half) if rep else 0}"); A(f"s_lshl_b32 s31, s18, {12+half}"); A("s_add_u32 s30, s30, s31"); A(f"s_add_u32 s30, s30, {OUT2}")
    A("s_mov_b32 s50, 0xffff0000"); A("s_mov_b32 s51, 0xffff0000"); A("s_mov_b32 s52, 0"); A("s_mov_b32 s53, -1")
    A("s_waitcnt lgkmcnt(0)")
    if dly: A(f"s_sleep {dly}")
    st(10)
    poll("L_poll2",[24,28,32,36],"v8",pf2,[0,256<<half,512<<half,768<<half])
    st(4)
    if clean==1:
        A("s_xor_b32 s35, s35, 0x100000"); A("s_mov_b32 exec_lo, 0x00ff00ff"); A("s_mov_b32 exec_hi, 0x00ff00ff")
        A("buffer_store_dwordx4 v[12:15], v40, s[40:43], s35 offen sc1"); A("s_mov_b64 exec, -1")
    comb4(24)
    A("v_lshlrev_b32 v27, 16, v26")
    A("s_nop 0")
    A("v_permlane32_swap_b32 v24, v25"); A("v_permlane32_swap_b32 v27, v26")
    A("v_add_f32 v24, v24, v25"); A("v_max_i32 v26, v26, v27")
    A("v_mul_f32 v24, 0x37a72f05, v24"); A("v_ashrrev_i32 v27, 31, v26")
    A("v_cvt_pk_bf16_f32 v24, v24, v24"); A("v_lshrrev_b32 v27, 1, v27")
    A(f"ds_write_b16 v5, v24 offset:{VECL}"); A("v_xor_b32 v26, v26, v27")
    A(f"ds_write_b16_d16_hi v5, v26 offset:{VECL+384}")
    if dry: A("s_cbranch_execz L_nb2")
    A("s_waitcnt lgkmcnt(0)"); A("s_barrier"); A("L_nb2:"); st(14)
    for kb in range(6): A(f"ds_read_b128 v[{24+4*kb}:{27+4*kb}], v7 offset:{VECL+64*kb}")
    def g1(t,kb):
        d=8+4*t; a=A1+(t*6+kb)*4
        A(f"v_mfma_f32_16x16x32_bf16 v[{d}:{d+3}], v[{a}:{a+3}], v[{24+4*kb}:{27+4*kb}], "+("0" if kb==0 else f"v[{d}:{d+3}]"))
    def relu(t,dst):
        d=8+4*t
        for r in range(4): A(f"v_maximum3_f32 v{d+r}, v{d+r}, 0, 0")
        A(f"v_cvt_pk_bf16_f32 v{dst}, v{d}, v{d+1}"); A(f"v_cvt_pk_bf16_f32 v{dst+1}, v{d+2}, v{d+3}")
    for kb in range(6):
        A(f"s_waitcnt lgkmcnt({5-kb})"); g1(0,kb)
    for kb in range(6): g1(1,kb)
    g1(2,0); g1(2,1); relu(0,20); g1(2,2); g1(2,3); relu(1,22); g1(2,4); g1(2,5)
    for t in range(4): A(f"v_mfma_f32_16x16x32_bf16 v[{24+4*t}:{27+4*t}], v[20:23], v[{B2+4*t}:{B2+4*t+3}], 0")
    A("s_nop 3"); relu(2,8); A("s_nop 1")
    for t in range(4): A(f"v_mfma_f32_16x16x16_bf16 v[{24+4*t}:{27+4*t}], v[8:9], v[{B2+16+2*t}:{B2+17+2*t}], v[{24+4*t}:{27+4*t}]")
    A("s_nop 5")
    A("v_cndmask_b32 v24, v24, v28, s[50:51]"); A("v_cndmask_b32 v25, v25, v29, s[50:51]")
    A("v_cndmask_b32 v32, v32, v36, s[50:51]"); A("v_cndmask_b32 v33, v33, v37, s[50:51]")
    A("v_cndmask_b32 v24, v24, v32, s[52:53]"); A("v_cndmask_b32 v25, v25, v33, s[52:53]")
    A("v_cvt_pk_bf16_f32 v24, v24, v25")
    A("v_lshlrev_b32 v25, 16, v24"); A("v_and_b32 v24, 0xffff0000, v24"); A("v_add_f32 v24, v24, v25")
    A("v_cvt_pk_bf16_f32 v24, v24, v24"); A("v_and_b32 v24, 0xffff0000, v24")
    A("v_mul_f32 v24, 0xbfb8aa3b, v24"); A("v_exp_f32 v24, v24"); A("s_lshl_b32 s30, s18, 8")
    A("v_add_f32 v24, 1.0, v24"); A("v_rcp_f32 v24, v24"); A("v_lshl_add_u32 v6, v0, 2, s30")
    A("v_cvt_pk_bf16_f32 v24, v24, v24"); A("v_and_b32 v24, 0xffff0000, v24")
    A(f"ds_write_b32 v6, v24 offset:{SCL}")
    if Q>1:
        A("s_waitcnt lgkmcnt(0)")
        A("L_final:")
        A("s_barrier")
    st(5)
    A("s_lshl_b32 s30, s18, 8"); A("v_lshl_add_u32 v6, v3, 5, s30")
    A(f"ds_read_b128 v[8:11], v6 offset:{SCL}"); A(f"ds_read_b128 v[12:15], v6 offset:{SCL+16}")
    A("s_mov_b32 s31, 0xffff0000")
    def xstore(j,so=None,first=False):
        r=D0+4*j; so=j*step if so is None else so
        T=16+8*(j%2)
        for d in range(4):
            A(f"v_lshlrev_b32 v{T+2*d}, 16, v{r+d}"); A(f"v_and_b32 v{T+2*d+1}, s31, v{r+d}")
        if first: A("s_waitcnt lgkmcnt(0)")
        for d in range(4): A(f"v_pk_mul_f32 v[{T+2*d}:{T+2*d+1}], v[{T+2*d}:{T+2*d+1}], v[{8+2*d}:{9+2*d}]")
        odd=(Q==1 and j%2==1)
        if not odd: A(f"s_mov_b32 s30, {so}")
        for d in range(4): A(f"v_cvt_pk_bf16_f32 v{r+d}, v{T+2*d}, v{T+2*d+1}")
        A(f"buffer_store_dwordx4 v[{r}:{r+3}], v1, s[24:27], s30 offen offset:{3072 if odd else 0} {sf2 if j<nsf else sf}")
    def cl():
        A("s_xor_b32 s35, s35, 0x100000"); A("v_mov_b32 v47, s34"); A("s_mov_b32 exec_lo, 0x00ff00ff"); A("s_mov_b32 exec_hi, 0x00ff00ff")
        A("buffer_store_dwordx4 v[44:47], v40, s[40:43], s35 offen sc1 nt"); A("s_mov_b64 exec, -1")
    for j in range(nfull):
        xstore(j,first=(j==0))
        if clean>1 and j==clean: cl()
    if Q>1: A(f"s_cmp_lg_u32 s17, {Q-1}"); A("s_cbranch_scc1 L_notail2")
    xstore(nfull, nfull*step-(Q-1)*3072)
    A("L_notail2:")
    A("s_or_b32 s31, s2, s16"); A("s_cmp_lg_u32 s31, 0"); A("s_cbranch_scc1 L_noep")
    A("v_mov_b32 v6, s34"); A("v_mov_b32 v7, 0"); A("s_mov_b64 exec, 1"); A("buffer_store_dword v6, v7, s[40:43], 0 offen sc1"); A("s_mov_b64 exec, -1")
    A("L_noep:")
    if dry: A("s_cbranch_execz L_red")
    def ws(ks):
        A("s_waitcnt lgkmcnt(0)")
        A("s_lshl_b32 s30, s2, 7"); A("s_add_u32 s30, s30, 0x8000000"); A("s_mov_b64 exec, 1"); A("v_mov_b32 v2, s30")
        for k in ks:
            A(f"v_mov_b32 v40, s{60+2*k}"); A(f"v_mov_b32 v41, s{61+2*k}"); A(f"global_store_dwordx2 v2, v[40:41], s[40:41] offset:{8*k}"); A("s_nop 1")
        A("s_mov_b64 exec, -1")
    if diag:
        st(6); A("s_waitcnt vmcnt(0)"); st(7)
        A(f"s_cmp_lg_u32 s16, {sw}"); A("s_cbranch_scc1 L_end"); A("s_getpc_b64 s[90:91]"); ws([0,1,2,3,4,5,6,7,10,12,13,14,15])
    if cal:
        if cal[1]==7: A("s_waitcnt vmcnt(0)"); st(7)
        if cal[0]<8: A(f"s_cmp_lg_u32 s12, {cal[0]}"); A("s_cbranch_scc1 L_end")
        A("s_mov_b32 s31, 0")
        A("L_cal:"); A("s_memrealtime s[46:47]"); A("s_add_u32 s31, s31, 1"); A("s_cmp_gt_u32 s31, 100000"); A("s_cbranch_scc1 L_end")
        A("s_waitcnt lgkmcnt(0)"); A(f"s_sub_u32 s46, s46, s{60+2*cal[1]}"); A("s_cmp_lt_u32 s46, 4000"); A("s_cbranch_scc1 L_cal")
    if probe: addprobe(A,st,probe,sw)
    A("L_end:"); A("s_endpgm")
    if fb:
        A("L_fb1:"); A("s_xor_b32 s30, s30, 0x100000")
        if wl: A(f"s_cmp_lg_u32 s31, {fb}"); A("s_cbranch_scc1 L_fb1r"); A("s_barrier")
        A("s_branch L_fb1r")
    if fb2:
        A("L_repub:"); A("s_mov_b32 exec_lo, 0x00ff00ff"); A("s_mov_b32 exec_hi, 0x00ff00ff")
        A("buffer_store_dwordx4 v[12:15], v40, s[40:43], s35 offen sc1"); A("s_mov_b64 exec, -1"); A("s_waitcnt vmcnt(0)"); A("s_branch L_poll2")
    if Q==1:
        A("L_helper:")
        if dry==1:
            A("s_cmp_eq_u32 s16, 3"); A("s_cbranch_scc1 L_h3")
            A("s_mov_b64 s[54:55], 0"); A("s_mov_b64 s[56:57], 0"); A("s_mov_b64 s[58:59], 0"); A("s_waitcnt vmcnt(0)")
            for r in (5,6,7,8,24,25,40): A(f"v_mov_b32 v{r}, 0")
            A("s_mov_b64 exec, 0"); A("s_branch L_notail")
            A("L_h3:")
        if otlb==1:
            A("s_add_u32 s24, s10, s3"); A("s_addc_u32 s25, s11, 0"); A("v_mul_u32_u24 v5, 1176, v0"); A("s_mov_b64 exec, 0x80000001"); A("global_load_dword v43, v5, s[24:25]"); A("s_mov_b64 exec, -1")
        if warm: dowarm()
        if wl:
            A("s_cmp_lt_u32 s13, 16"); A("s_cselect_b32 s36, s6, s8"); A("s_cselect_b32 s37, s7, s9"); A("s_and_b32 s30, s13, 15"); A("s_mul_i32 s30, s30, 1152")
            A("v_lshlrev_b32 v5, 7, v0"); A("s_mov_b64 exec, 0x1ff"); A("buffer_load_dword v43, v5, s[36:39], s30 offen"); A("s_mov_b64 exec, -1")
            if not rf: A("s_cmp_ge_u32 s13, 12"); A("s_cbranch_scc1 L_end")
        for lo,base in ((6,W1L),(8,W2L)):
            if wl: break
            A(f"s_mov_b32 s36, s{lo}"); A(f"s_mov_b32 s37, s{lo+1}")
            for i in range(18):
                if i%4==0: A(f"s_mov_b32 m0, {base+i*1024}"); A(f"s_mov_b32 s30, {i*1024}")
                A(f"buffer_load_dwordx4 v4, s[36:39], s30 offen offset:{(i%4)*1024} lds")
        tag(); A("s_waitcnt vmcnt(0)"); st(11)
        if otlb==2:
            A("s_add_u32 s24, s10, s3"); A("s_addc_u32 s25, s11, 0"); A("v_mul_u32_u24 v5, 1176, v0"); A("s_mov_b64 exec, 0x80000001"); A("global_load_dword v43, v5, s[24:25]"); A("s_mov_b64 exec, -1")
        A("s_barrier")
        A("s_cmp_ge_u32 s13, 12"); A("s_cbranch_scc1 "+("L_rf" if rf else "L_end"))
        A("L_red:")
        if prio: A("s_setprio 3")
        reducer()
        if diag and dry: A("s_cbranch_execnz L_wr89"); st(11); ws((11,)); A("s_endpgm"); A("L_wr89:")
        if diag: ws((8,9,11))
        A("s_endpgm")
    else:
        A("L_other:")
        A("s_cmp_ge_u32 s13, 12"); A("s_cbranch_scc1 L_o2"); A("s_cmp_lg_u32 s16, 3"); A("s_cbranch_scc1 L_o2")
        reducer()
        if diag: ws((8,9))
        A("L_o2:"); A("s_barrier"); A("s_branch L_final")
    A('L_codeend:')
    return wrap(L,block,LDS,NV)
```

```python
from build import build, KN
import gen1
from gen1 import add, fin
from gen2 import wrap, addprobe
def gen(lf='nt', sf='sc1 nt', diag=False, probe=None, sw=0, fb=32, fb2=12, clean=2, own=1, sw2=0, dly=0, xmap=1, early=1, cf='sc1', sg=96, w1c=0, nc=0, rd=0, wf=0, late=0, imb=0, pg=0, ba=0):
    L=[]; A=L.append
    NA,NB=((0,25),(22,26),(17,29))[imb]; SK=NB-NA; nfull=NB-1; REC=NB*3072 if imb else 75264; W1L,W2L=0,18432; VECL=36864; SCL=VECL+768; LDS=SCL+768
    INBOX=4096; OUT2=0x80000; LIM=0x80000; DUP=0x100000
    D0=48; A1=D0+4*(nfull+1); B2=A1+72; NV=B2+24; bv='v'
    if imb==2: NV=B2; B2=0; bv='a'
    def st(k):
        if diag or (probe and k in (0,probe[0],probe[3])): A(f"s_memrealtime s[{60+2*k}:{61+2*k}]")
    def ex(m):
        if m==-1: A("s_mov_b64 exec, -1")
        else: A("s_mov_b32 exec_lo, 0x00ff00ff"); A("s_mov_b32 exec_hi, 0x00ff00ff")
    def tag(): A("s_waitcnt lgkmcnt(0)"); A("s_mul_i32 s34, s34, 1664525"); A("s_add_u32 s34, s34, 1013904223")
    def dma():
        for lo,base in ((6,W1L),(8,W2L)):
            A(f"s_mov_b32 s36, s{lo}"); A(f"s_mov_b32 s37, s{lo+1}")
            for i in range(6):
                if sw2 and lo==8:
                    A(f"s_add_u32 m0, s32, {base+i*1024}"); A(f"s_mov_b32 s30, {i*3072}"); A("buffer_load_dwordx4 v41, s[36:39], s30 offen lds"); continue
                if i%4==0: A(f"s_add_u32 m0, s32, {base+i*1024}"); A(f"s_add_u32 s30, s32, {i*1024}")
                A(f"buffer_load_dwordx4 v4, s[36:39], s30 offen offset:{(i%4)*1024} lds")
    st(0)
    A("s_load_dwordx8 s[4:11], s[0:1], 0"); A("s_load_dwordx2 s[40:41], s[0:1], 40")
    A("s_cmp_ge_u32 s2, 256"); A("s_cbranch_scc1 L_end")
    A("v_lshrrev_b32 v1, 6, v0"); A("v_and_b32 v0, 63, v0")
    A("v_readfirstlane_b32 s16, v1")
    A("s_cmp_lg_u32 s16, 3"); A("s_cbranch_scc1 L_nocpf")
    A("s_getpc_b64 s[44:45]"); A("L_pc:"); A("v_lshlrev_b32 v5, 7, v0")
    A("v_min_u32 v6, L_codeend-L_pc-4, v5"); A("v_mov_b32 v9, s45"); A("v_add_co_u32 v8, vcc, s44, v6"); A("v_addc_co_u32 v9, vcc, 0, v9, vcc")
    A("global_load_dword v44, v[8:9], off")
    if pg:
        A("v_add_u32 v6, 8192, v5"); A("v_min_u32 v6, L_codeend-L_pc-4, v6"); A("v_mov_b32 v9, s45"); A("v_add_co_u32 v8, vcc, s44, v6"); A("v_addc_co_u32 v9, vcc, 0, v9, vcc")
        A("global_load_dword v45, v[8:9], off")
    A("L_nocpf:")
    A("s_and_b32 s12, s2, 7"); A("s_lshr_b32 s13, s2, 3")
    A("s_mov_b32 s38, 18432"); A("s_mov_b32 s39, 0x20000"); A("s_mov_b32 s42, 0x200000"); A("s_mov_b32 s43, 0x20000")
    A("v_and_b32 v3, 7, v0"); A("v_lshlrev_b32 v4, 4, v0")
    A("s_cmp_eq_u32 s16, 3"); A("s_cbranch_scc1 L_helper")
    if imb:
        A("s_cmp_lt_u32 s13, 12"); A(f"s_cselect_b32 s3, {NA}, {NB}"); A(f"s_movk_i32 s30, {-12*NB}"); A(f"s_cmovk_i32 s30, {20*NB-SK}"); A("s_mul_i32 s3, s3, s13"); A("s_add_i32 s3, s3, s30")
        A("s_mul_i32 s30, s12, 784"); A("s_add_u32 s3, s3, s30"); A("s_mul_i32 s3, s3, 3072")
    elif xmap: A("s_lshl_b32 s3, s12, 5"); A("s_add_u32 s3, s3, s13"); A("s_mul_i32 s3, s3, 75264")
    else: A("s_mul_i32 s3, s2, 75264")
    A("v_lshrrev_b32 v2, 3, v0"); A("s_lshl_b32 s19, s16, 7")
    A("v_mul_u32_u24 v2, 384, v2"); A("v_lshl_add_u32 v2, v3, 4, v2"); A("v_add_u32 v1, s19, v2")
    A(f"s_mov_b32 s22, {REC}"); A("s_mov_b32 s23, 0x20000")
    st(15)
    A("s_waitcnt lgkmcnt(0)")
    st(11)
    A("s_add_u32 s20, s4, s3"); A("s_addc_u32 s21, s5, 0")
    if wf==1: A("s_cmp_ge_u32 s13, 12"); A("s_cbranch_scc1 L_nodma0"); A("s_mul_i32 s32, s16, 6144"); dma(); A("L_nodma0:")
    if imb: A("s_cmp_lt_u32 s13, 12"); A("s_cbranch_scc1 L_ld4")
    for j in range(nfull+1):
        r=D0+4*j
        if j==SK: A("L_ld4:")
        if j>1 and j%2==0: A(f"s_mov_b32 s30, {j*3072}")
        A(f"buffer_load_dwordx4 v[{r}:{r+3}], v1, s[20:23], {'0' if j<2 else 's30'} offen offset:{3072*(j%2)} {lf}")
        if j==(SK+1 if imb else 1): A("s_load_dword s34, s[40:41], 0")
    st(1)
    A("s_add_u32 s24, s10, s3"); A("s_addc_u32 s25, s11, 0"); A(f"s_mov_b32 s26, {REC}"); A("s_mov_b32 s27, 0x20000")
    A("v_and_b32 v5, 1, v0"); A("v_lshlrev_b32 v5, 4, v5"); A("v_mov_b32 v6, 0x3f80"); A("v_lshlrev_b32 v5, v5, v6")
    A("v_bfe_u32 v6, v0, 2, 2")
    for d in range(4): A(f"v_cmp_eq_u32 vcc, {d}, v6"); A("s_nop 1"); A(f"v_cndmask_b32 v{8+d}, 0, v5, vcc")
    A("v_lshrrev_b32 v6, 4, v0"); A("v_lshlrev_b32 v40, 12, v6"); A("v_lshl_add_u32 v40, v3, 4, v40")
    A("s_mul_i32 s35, s12, 12"); A("s_lshl_b32 s30, s16, 2"); A("s_add_u32 s35, s35, s30"); A("s_lshl_b32 s35, s35, 5"); A("s_add_u32 s35, s35, s13")
    A("s_lshl_b32 s35, s35, 7"); A(f"s_add_u32 s35, s35, {INBOX}")
    if sw2: A("v_lshlrev_b32 v41, 5, v6"); A("v_xor_b32 v41, v41, v1")
    A("s_mul_i32 s32, s16, 6144"); A("s_mov_b32 s33, 0x7fff7fff")
    if imb:
        for d in range(4): A(f"v_mov_b32 v{12+d}, 0"); A(f"v_not_b32 v{16+d}, s33"); A(f"v_mov_b32 v{20+d}, -1")
    tag()
    if imb: A("s_cmp_lt_u32 s13, 12"); A("s_cbranch_scc1 L_ac4")
    for j in range(nfull+1):
        r=D0+4*j
        if imb:
            if j==SK: A("L_ac4:")
            A(f"s_waitcnt vmcnt({nfull-j})"); A(f"v_mfma_f32_16x16x32_bf16 v[12:15], v[8:11], v[{r}:{r+3}], v[12:15]")
            for d in range(4): A(f"v_pk_max_i16 v{16+d}, v{16+d}, v{r+d}"); A(f"v_pk_min_u16 v{20+d}, v{20+d}, v{r+d}")
            continue
        A(f"s_waitcnt vmcnt({nfull-j})")
        A(f"v_mfma_f32_16x16x32_bf16 v[12:15], v[8:11], v[{r}:{r+3}], "+("0" if j==0 else "v[12:15]"))
        if j==0: continue
        if j==nfull: A("s_mov_b64 exec, 0xffffffff")
        for d in range(4):
            A(f"v_pk_max_i16 v{16+d}, v{(D0 if j==1 else 16)+d}, v{r+d}"); A(f"v_pk_min_u16 v{20+d}, v{(D0 if j==1 else 20)+d}, v{r+d}")
        if j==nfull: ex(-1)
    st(2)
    for d in range(4): A(f"v_pk_ashrrev_i16 v{24+d}, 15, v{16+d} op_sel_hi:[0,1]"); A(f"v_xor_b32 v{20+d}, s33, v{20+d}")
    for d in (0,2,1,3): A(f"v_bfi_b32 v{16+d}, v{24+d}, v{20+d}, v{16+d}")
    dpp="row_ror:8 row_mask:0xf bank_mask:0xf"
    A("v_permlane32_swap_b32 v16, v18"); A(f"v_add_f32_dpp v12, v12, v12 {dpp}"); A("v_permlane32_swap_b32 v17, v19")
    A("v_pk_max_i16 v16, v16, v18"); A("v_pk_max_i16 v17, v17, v19")
    A(f"v_add_f32_dpp v13, v13, v13 {dpp}"); A("v_mov_b32 v15, s34")
    A("v_permlane16_swap_b32 v16, v17"); A("v_pk_max_i16 v16, v16, v17"); A("s_nop 1")
    A(f"v_mov_b32_dpp v17, v16 {dpp}"); A("v_pk_max_i16 v14, v16, v17")
    ex(0); A("buffer_store_dwordx4 v[12:15], v40, s[40:43], s35 offen"); ex(-1)
    st(3)
    if ba in (0,3,4): A("s_barrier")
    st(13)
    if nc or wf: A("s_cmp_lt_u32 s13, 12"); A("s_cbranch_scc1 L_nodma")
    if late: A("s_barrier")
    dma()
    A("L_nodma:")
    if ba in (1,4): A("s_barrier")
    if pg==1: A("s_branch L_p2"); A(".p2alignl 12, 0xbf810000"); A("L_p2:")
    if pg==2: A("s_branch L_p2"); A("@@H"); A(".p2alignl 12, 0xbf810000"); A("L_p2:")
    A(f"s_add_u32 s35, s35, {DUP}")
    if own:
        A("s_add_u32 s17, s16, 1"); A("s_cmp_eq_u32 s17, 3"); A("s_cselect_b32 s17, 0, s17"); A("s_add_u32 s18, s16, s17"); A("s_sub_u32 s18, 3, s18")
    A("v_bfe_u32 v5, v0, 2, 2"); A("v_lshrrev_b32 v6, 4, v0"); A("v_and_b32 v7, 3, v0")
    if w1c: A("v_lshrrev_b32 v24, 2, v0")
    else: A("v_lshl_add_u32 v24, v6, 3, v5")
    A("v_mul_u32_u24 v24, 96, v24"); A("v_lshl_add_u32 v24, v7, 3, v24")
    if own:
        A("s_mul_i32 s30, s17, 6144"); A("s_mul_i32 s31, s18, 6144"); A("v_add_u32 v30, s30, v24"); A("v_add_u32 v31, s31, v24"); A("v_add_u32 v29, s32, v24")
    def rd1():
        for t in range(3):
            for kb in range(6):
                for h in range(2):
                    r=A1+(t*6+kb)*4+2*h; k=kb%2 if own else kb
                    A(f"ds_read_b64_tr_b16 v[{r}:{r+1}], v{29+kb//2 if own else 24} offset:{W1L+(32*k+(16 if w1c else 4)*h)*96+32*t}")
    def rd2():
        for t in range(4):
            for ht in range(3):
                r=B2+t*4+2*ht if ht<2 else B2+16+2*t
                if sw2: A(f"ds_read_b64_tr_b16 {bv}[{r}:{r+1}], v{25+t} offset:{W2L+ht*2048}")
                else: A(f"ds_read_b64_tr_b16 {bv}[{r}:{r+1}], v25 offset:{W2L+16*ht*384+32*t}")
    A("v_lshrrev_b32 v25, 2, v0")
    if sw2:
        A("v_lshlrev_b32 v25, 7, v25"); A("v_lshl_add_u32 v25, v7, 3, v25"); A("v_bfe_u32 v26, v0, 3, 2"); A("v_lshl_add_u32 v25, v26, 5, v25"); A("v_add_u32 v25, s32, v25")
        for t in (1,2,3): A(f"v_xor_b32 v{25+t}, {32*t}, v25")
    else: A("v_mul_u32_u24 v25, 384, v25"); A("v_lshl_add_u32 v25, v7, 3, v25"); A("v_add_u32 v25, s19, v25")
    A("v_bfe_u32 v5, v0, 3, 2"); A("v_lshrrev_b32 v2, 5, v0"); A("v_lshlrev_b32 v8, 7, v2"); A("v_lshl_add_u32 v8, v5, 10, v8"); A("v_lshl_add_u32 v8, v3, 4, v8")
    A("v_lshl_add_u32 v5, v3, 2, v5"); A("v_lshl_add_u32 v5, v5, 1, v2")
    if w1c: A("v_and_b32 v9, 0x23, v5"); A("v_bfe_u32 v10, v5, 2, 2"); A("v_lshl_or_b32 v9, v10, 3, v9"); A("v_bfe_u32 v10, v5, 4, 1"); A("v_lshl_or_b32 v5, v10, 2, v9")
    A("v_lshl_add_u32 v5, v5, 1, s19")
    A("v_and_b32 v7, 1, v0"); A("v_mul_u32_u24 v7, 384, v7"); A("v_lshl_add_u32 v7, v6, 4, v7")
    if own: A("s_lshl_b32 s30, s17, 7"); A("s_lshl_b32 s31, s18, 7"); A("v_add_u32 v2, s30, v7"); A("v_add_u32 v6, s31, v7"); A("v_add_u32 v7, s19, v7")
    A("s_lshl_b32 s30, s16, 8"); A("v_lshl_add_u32 v4, v0, 2, s30"); A("v_lshl_add_u32 v3, v3, 5, s30")
    A("s_mul_i32 s30, s12, 12288"); A("s_lshl_b32 s31, s16, 12"); A("s_add_u32 s30, s30, s31"); A(f"s_add_u32 s30, s30, {OUT2}")
    A("s_mov_b32 s50, 0xffff0000"); A("s_mov_b32 s51, 0xffff0000"); A("s_mov_b32 s52, 0"); A("s_mov_b32 s53, -1"); A("s_brev_b32 s33, -2")
    A("s_waitcnt vmcnt(0)")
    if ba in (2,3): A("s_barrier")
    if sw2: rd2(); A("s_barrier"); st(12); rd1()
    else: A("s_barrier"); st(12); rd1(); rd2()
    A("s_mov_b32 s31, 0"); A("s_waitcnt lgkmcnt(0)")
    if dly: A(f"s_sleep {dly}")
    st(10)
    c1=["v_pk_max_i16 v26, v26, v30","v_pk_add_f32 v[24:25], v[24:25], v[28:29]"]
    c2=["v_pk_max_i16 v34, v34, v38","v_pk_add_f32 v[32:33], v[32:33], v[36:37]","v_pk_max_i16 v26, v26, v34","v_pk_add_f32 v[24:25], v[24:25], v[32:33]"]
    def poll(name,vaddr,step,slow,n):
        A(f"{name}:")
        for i in range(4): A(f"buffer_load_dwordx4 v[{24+4*i}:{27+4*i}], {vaddr}, s[40:43], s30 offen offset:{i*step} sc1")
        A("s_add_u32 s31, s31, 1"); A(f"s_cmp_ge_u32 s31, {n}"); A(f"s_cbranch_scc1 {slow}"); A(f"{name}r:")
        A("s_waitcnt vmcnt(2)"); A("v_cmp_ne_u32 vcc, s34, v27"); A("v_cmp_ne_u32 s[44:45], s34, v31")
        if early: L.extend(c1)
        A("s_or_b64 s[44:45], vcc, s[44:45]")
        A("s_waitcnt vmcnt(0)"); A("v_cmp_ne_u32 vcc, s34, v35"); A("v_cmp_ne_u32 s[46:47], s34, v39")
        if early: L.extend(c2)
        A("s_or_b64 s[44:45], vcc, s[44:45]"); A("s_or_b64 s[44:45], s[44:45], s[46:47]"); A(f"s_cbranch_scc1 {name}")
        A(f"{name}x:")
        if not early: L.extend(c1+c2)
    poll("L_poll2","v8",256,"L_slow2",fb2)
    st(4)
    if clean==1: A(f"s_xor_b32 s35, s35, {DUP}"); ex(0); A(f"buffer_store_dwordx4 v[12:15], v40, s[40:43], s35 offen {cf}"); ex(-1)
    if clean==4: ex(0); A(f"buffer_store_dwordx4 v[12:15], v40, s[40:43], s35 offen {cf}"); ex(-1)
    if clean==5: A(f"buffer_store_dwordx4 v[12:15], v1, s[24:27], 0 offen {sf}")
    A("v_lshlrev_b32 v27, 16, v26"); A("s_nop 0")
    A("v_permlane32_swap_b32 v24, v25"); A("v_permlane32_swap_b32 v27, v26")
    A("v_add_f32 v24, v24, v25"); A("v_max_i32 v26, v26, v27")
    A("v_mul_f32 v24, 0x37a72f05, v24"); A("v_ashrrev_i32 v27, 31, v26")
    A("v_cvt_pk_bf16_f32 v24, v24, v24"); A("v_bitop3_b32 v26, v26, v27, s33 bitop3:0x78")
    A(f"ds_write_b16 v5, v24 offset:{VECL}"); A(f"ds_write_b16_d16_hi v5, v26 offset:{VECL+384}")
    def vrd(kb): A(f"ds_read_b128 v[{24+4*kb}:{27+4*kb}], v{(7,2,6)[kb//2] if own else 7} offset:{VECL+64*(kb%2 if own else kb)}")
    def g1(t,kb):
        d=8+4*t; a=A1+(t*6+kb)*4
        A(f"v_mfma_f32_16x16x32_bf16 v[{d}:{d+3}], v[{a}:{a+3}], v[{24+4*kb}:{27+4*kb}], "+("0" if kb==0 else f"v[{d}:{d+3}]"))
    def relu(t,dst):
        d=8+4*t
        return [f"v_maximum3_f32 v{d+r}, v{d+r}, 0, 0" for r in range(4)]+[f"v_cvt_pk_bf16_f32 v{dst}, v{d}, v{d+1}",f"v_cvt_pk_bf16_f32 v{dst+1}, v{d+2}, v{d+3}"]
    r0,r1,r2=relu(0,20),relu(1,22),relu(2,8)
    if own:
        vrd(0); vrd(1); A("s_waitcnt lgkmcnt(2)"); A("s_barrier"); st(14)
        if clean==6: A(f"s_xor_b32 s35, s35, {DUP}"); ex(0); A(f"buffer_store_dwordx4 v[12:15], v40, s[40:43], s35 offen {cf}"); ex(-1)
        for kb in range(2,6): vrd(kb)
        for kb in range(2):
            A(f"s_waitcnt lgkmcnt({5-kb})")
            for t in range(3): g1(t,kb)
        for kb in range(2,6): A(f"s_waitcnt lgkmcnt({5-kb})"); g1(0,kb)
        g1(1,2); A("s_nop 1"); g1(1,3); A("s_nop 1"); g1(1,4); A("s_nop 0"); A(r0[0]); g1(1,5); L.extend(r0[1:3]); g1(2,2); L.extend(r0[3:5]); g1(2,3)
        A(r0[5]); A("s_nop 0"); g1(2,4); L.extend(r1[0:2]); g1(2,5); L.extend(r1[2:6]); A("s_nop 1")
    else:
        A("s_waitcnt lgkmcnt(0)"); A("s_barrier"); st(14)
        for kb in range(6): vrd(kb)
        for kb in range(6): A(f"s_waitcnt lgkmcnt({5-kb})"); g1(0,kb)
        for kb in range(6): g1(1,kb)
        g1(2,0); g1(2,1); L.extend(r0); g1(2,2); g1(2,3); L.extend(r1); g1(2,4); g1(2,5)
    def g2a(t): A(f"v_mfma_f32_16x16x32_bf16 v[{24+4*t}:{27+4*t}], v[20:23], {bv}[{B2+4*t}:{B2+4*t+3}], 0")
    if own: g2a(0); A("s_nop 0"); A(r2[0]); g2a(1); L.extend(r2[1:3]); g2a(2); L.extend(r2[3:5]); g2a(3); A(r2[5]); A("s_nop 1")
    else: g2a(0); A("s_nop 1"); g2a(1); A("s_nop 1"); g2a(2); A("s_nop 0"); A(r2[0]); g2a(3); L.extend(r2[1:]); A("s_nop 1")
    for t in range(4): A(f"v_mfma_f32_16x16x16_bf16 v[{24+4*t}:{27+4*t}], v[8:9], {bv}[{B2+16+2*t}:{B2+17+2*t}], v[{24+4*t}:{27+4*t}]")
    def unpack(j):
        r=D0+4*j; T=16 if j%2==0 else 40
        for d in range(4): A(f"v_lshlrev_b32 v{T+2*d}, 16, v{r+d}"); A(f"v_and_b32 v{T+2*d+1}, s50, v{r+d}")
    A("s_nop 5")
    A("v_cndmask_b32 v24, v24, v28, s[50:51]"); A("v_cndmask_b32 v25, v25, v29, s[50:51]")
    A("v_cndmask_b32 v32, v32, v36, s[50:51]"); A("v_cndmask_b32 v33, v33, v37, s[50:51]")
    A("v_cndmask_b32 v24, v24, v32, s[52:53]"); A("v_cndmask_b32 v25, v25, v33, s[52:53]")
    A("v_cvt_pk_bf16_f32 v24, 0, v24"); A("v_cvt_pk_bf16_f32 v25, 0, v25"); A("v_add_f32 v24, v24, v25"); A("v_cvt_pk_bf16_f32 v24, 0, v24")
    A("v_mul_f32 v24, 0xbfb8aa3b, v24"); A("v_exp_f32 v24, v24"); A("s_nop 0")
    A("v_add_f32 v24, 1.0, v24"); A("v_rcp_f32 v24, v24"); A("s_nop 0"); A("v_cvt_pk_bf16_f32 v24, 0, v24")
    A(f"ds_write_b32 v4, v24 offset:{SCL}")
    st(5)
    A(f"ds_read_b128 v[8:11], v3 offset:{SCL}"); A(f"ds_read_b128 v[12:15], v3 offset:{SCL+16}")
    order=list(range(SK,NB))+list(range(SK)) if imb else list(range(nfull+1))
    unpack(order[0]); unpack(order[1]); A("s_waitcnt lgkmcnt(0)")
    for n,j in enumerate(order):
        r=D0+4*j; T=16 if j%2==0 else 40
        if imb and j==0: A("s_cmp_lt_u32 s13, 12"); A("s_cbranch_scc1 L_stx")
        if n>1: unpack(j)
        for d in range(4): A(f"v_pk_mul_f32 v[{T+2*d}:{T+2*d+1}], v[{T+2*d}:{T+2*d+1}], v[{8+2*d}:{9+2*d}]")
        if j>1 and j%2==0: A(f"s_mov_b32 s30, {j*3072}")
        for d in range(4): A(f"v_cvt_pk_bf16_f32 v{r+d}, v{T+2*d}, v{T+2*d+1}")
        A(f"buffer_store_dwordx4 v[{r}:{r+3}], v1, s[24:27], {'0' if j<2 else 's30'} offen offset:{3072*(j%2)} {sf}")
    A("L_stx:")
    def ws(ks):
        A("s_waitcnt lgkmcnt(0)"); A("s_lshl_b32 s30, s2, 7"); A("s_add_u32 s30, s30, 0x8000000"); A("s_mov_b64 exec, 1"); A("v_mov_b32 v2, s30")
        for k in ks: A(f"v_mov_b32 v40, s{60+2*k}"); A(f"v_mov_b32 v41, s{61+2*k}"); A(f"global_store_dwordx2 v2, v[40:41], s[40:41] offset:{8*k}"); A("s_nop 1")
        ex(-1)
    if diag: st(6); A("s_waitcnt vmcnt(0)"); st(7); A(f"s_cmp_lg_u32 s16, {sw}"); A("s_cbranch_scc1 L_end"); ws([0,1,2,3,4,5,6,7,10,11,12,13,14,15])
    if probe: A("v_lshlrev_b32 v4, 4, v0"); addprobe(A,st,probe,sw)
    A("L_end:"); A("s_endpgm")
    hs=len(L)
    A("L_slow2:"); A(f"s_cmp_gt_u32 s31, {LIM}"); A("s_cbranch_scc1 L_to2"); A(f"s_cmp_lg_u32 s31, {fb2}"); A("s_cbranch_scc1 L_poll2r")
    ex(0); A("buffer_store_dwordx4 v[12:15], v40, s[40:43], s35 offen sc1"); ex(-1); A("s_waitcnt vmcnt(0)"); A("s_branch L_poll2r")
    A("L_to2:"); A("s_waitcnt vmcnt(0)"); A("s_branch L_poll2x")
    A("L_slow1:"); A(f"s_cmp_gt_u32 s31, {LIM}"); A("s_cbranch_scc1 L_to1"); A(f"s_xor_b32 s30, s30, {DUP}")
    A(f"s_cmp_lg_u32 s31, {fb}"); A("s_cbranch_scc1 L_poll1r"); A("s_barrier")
    if late: A("s_barrier")
    A("s_branch L_poll1r")
    A("L_to1:"); A("s_waitcnt vmcnt(0)"); A("s_branch L_poll1x")
    A("L_helper:")
    A("v_lshlrev_b32 v5, 7, v0"); A("s_and_b32 s33, s13, 15"); A("s_mul_i32 s33, s33, 1152")
    A("s_mul_i32 s30, s12, 12"); A("s_add_u32 s30, s30, s13"); A("s_lshl_b32 s31, s30, 10"); A("s_lshl_b32 s30, s30, 12")
    A(f"s_add_u32 s30, s30, {INBOX}"); A(f"s_add_u32 s31, s31, {OUT2}"); A("v_lshlrev_b32 v6, 6, v0")
    A("s_waitcnt lgkmcnt(0)"); A("s_load_dword s34, s[40:41], 0")
    A("s_cmp_lt_u32 s13, 16"); A("s_cselect_b32 s36, s6, s8"); A("s_cselect_b32 s37, s7, s9")
    A("s_mov_b64 exec, 0x1ff"); A("buffer_load_dword v43, v5, s[36:39], s33 offen"); ex(-1)
    A("s_cmp_ge_u32 s13, 12"); A("s_cbranch_scc1 L_end")
    A("buffer_load_dword v46, v6, s[40:43], s30 offen sc1"); A("buffer_load_dword v47, v4, s[40:43], s31 offen sc1")
    A("v_lshrrev_b32 v5, 3, v0"); A("v_mul_u32_u24 v5, 12288, v5"); A("v_lshl_add_u32 v5, v3, 4, v5")
    A("s_lshl_b32 s35, s13, 10"); A("s_lshl_b32 s31, s12, 7"); A("s_add_u32 s35, s35, s31"); A(f"s_add_u32 s35, s35, {OUT2}")
    if wf==2:
        for lo,base in ((6,W1L),(8,W2L)):
            A(f"s_mov_b32 s36, s{lo}"); A(f"s_mov_b32 s37, s{lo+1}")
            for i in range(18):
                if i%4==0: A(f"s_mov_b32 m0, {base+i*1024}"); A(f"s_mov_b32 s31, {i*1024}")
                A(f"buffer_load_dwordx4 v4, s[36:39], s31 offen offset:{(i%4)*1024} lds")
    tag(); A("s_mov_b32 s31, 0"); A("s_waitcnt vmcnt(0)"); A("s_barrier")
    if ba in (3,4): A("s_barrier")
    if rd: A(f"s_sleep {rd}")
    poll("L_poll1","v4",1024,"L_slow1",fb)
    st(8)
    A("s_nop 0")
    A(f"v_mov_b32_dpp v30, v26 {dpp}"); A(f"v_add_f32_dpp v24, v24, v24 {dpp}"); A(f"v_add_f32_dpp v25, v25, v25 {dpp}"); A("v_pk_max_i16 v26, v26, v30")
    for w in ("16","32"):
        A("v_mov_b32 v28, v24"); A("v_mov_b32 v29, v25"); A("v_mov_b32 v30, v26")
        A(f"v_permlane{w}_swap_b32 v24, v28"); A(f"v_permlane{w}_swap_b32 v25, v29"); A(f"v_permlane{w}_swap_b32 v26, v30")
        A("v_add_f32 v24, v24, v28"); A("v_add_f32 v25, v25, v29"); A("v_pk_max_i16 v26, v26, v30")
    A("buffer_store_dwordx4 v[24:27], v5, s[40:43], s35 offen sc1")
    st(9)
    A(f"s_cmp_ge_u32 s31, {fb}"); A("s_cbranch_scc1 L_rb2"); A("s_barrier")
    if late: A("s_barrier")
    A("L_rb2:")
    A(f"s_andn2_b32 s30, s30, {DUP}"); A("v_mov_b32 v27, s34")
    def cl():
        for i in range(4): A(f"buffer_store_dwordx4 v[24:27], v4, s[40:43], s30 offen offset:{i*1024} {cf}")
    if clean==3: cl()
    if clean==8: A("s_cmp_lg_u32 s13, 0"); A("s_cbranch_scc1 L_nowb"); A("buffer_wbl2 sc1"); A("L_nowb:")
    A("s_barrier")
    if clean==2: cl()
    if clean==7: A("s_cmp_lg_u32 s13, 0"); A("s_cbranch_scc1 L_noep"); A("buffer_wbl2 sc1")
    A("s_cmp_lg_u32 s2, 0"); A("s_cbranch_scc1 L_noep")
    A("s_mov_b64 exec, 1"); A("buffer_store_dword v27, v4, s[40:43], 0 offen sc1"); ex(-1)
    A("L_noep:")
    if diag: ws((8,9))
    A("s_endpgm")
    if pg==2:
        H=L[hs:]; del L[hs:]; i=L.index("@@H"); L[i:i+1]=H
    A("L_codeend:")
    a,b,l,vg=wrap(L,256,LDS,NV,sg)
    if imb==2: a=a.replace(f"next_free_vgpr {vg}",f"next_free_vgpr {vg+24}")
    if pg==2: a=a.replace(".p2align 8\n",".p2align 12\n.fill 704, 4, 0xbf810000\n.p2align 8\n")
    return a,b,l,vg
def ren(i):
    for r in (1,2): gen1.specs.append(gen1.specs[i].replace(KN,f'__hx_renum{r}_256_{KN}'))
```

```python
from gen3 import *
import shutil
b=dict(g=gen,clean=7,pg=2,imb=1,ba=1)
add('f0',**b); add('f1',sf='sc1',**b)
for i in (2,4): shutil.copy('f0.s',f'f{i}.s'); shutil.copy('f1.s',f'f{i+1}.s')
ren(0)
fin()
```

```python
from build import build, KN
import gen1
from gen1 import add, fin
from gen2 import wrap, addprobe
def gen(lf='nt', sf='sc1 nt', diag=False, probe=None, sw=0, fb=32, fb2=12, clean=2, own=1, sw2=0, dly=0, xmap=1, early=1, cf='sc1', sg=96, tr=0, rl=0, md=0, cw=0, pk=0, pm=0, pd=0, w1c=0, nc=0, rd=0, wf=0, late=0, imb=0, pg=0, ba=0, ded=0, xl=0, nb=1):
    L=[]; A=L.append
    NA,NB=((0,28 if ded else 25),(22,26),(17,29))[imb]; SK=NB-NA; nfull=NB-1; REC=NB*3072 if (imb or ded) else 75264; W1L,W2L=0,18432; VECL=36864; SCL=VECL+768; LDS=SCL+768+xl
    INBOX=4096; OUT2=0x80000; LIM=0x80000; DUP=0x100000
    D0=48; A1=D0+4*(nfull+1); B2=A1+72; NV=B2+24; bv='v'
    if imb==2: NV=B2; B2=0; bv='a'
    def st(k):
        if diag or (probe and k in (0,probe[0],probe[3])): A(f"s_memrealtime s[{60+2*k}:{61+2*k}]")
    def ex(m):
        if m==-1: A("s_mov_b64 exec, -1")
        else: A("s_mov_b32 exec_lo, 0x00ff00ff"); A("s_mov_b32 exec_hi, 0x00ff00ff")
    def tag(): A("s_waitcnt lgkmcnt(0)"); A("s_mul_i32 s34, s34, 1664525"); A("s_add_u32 s34, s34, 1013904223")
    def dma():
        for lo,base in ((6,W1L),(8,W2L)):
            A(f"s_mov_b32 s36, s{lo}"); A(f"s_mov_b32 s37, s{lo+1}")
            for i in range(6):
                if sw2 and lo==8:
                    A(f"s_add_u32 m0, s32, {base+i*1024}"); A(f"s_mov_b32 s30, {i*3072}"); A("buffer_load_dwordx4 v41, s[36:39], s30 offen lds"); continue
                if i%4==0: A(f"s_add_u32 m0, s32, {base+i*1024}"); A(f"s_add_u32 s30, s32, {i*1024}")
                A(f"buffer_load_dwordx4 v4, s[36:39], s30 offen offset:{(i%4)*1024} lds")
    st(0)
    A("s_load_dwordx8 s[4:11], s[0:1], 0"); A("s_load_dwordx2 s[40:41], s[0:1], 40")
    A("s_cmp_ge_u32 s2, 256"); A("s_cbranch_scc1 L_end")
    A("v_lshrrev_b32 v1, 6, v0"); A("v_and_b32 v0, 63, v0")
    A("v_readfirstlane_b32 s16, v1")
    if rl: A(f"s_add_u32 s2, s2, {rl}"); A("s_and_b32 s2, s2, 0xff")
    A("s_cmp_ge_u32 s2, 32" if ded else "s_cmp_lg_u32 s16, 3"); A("s_cbranch_scc1 L_nocpf")
    A("s_getpc_b64 s[44:45]"); A("L_pc:")
    if tr: L.insert(L.index("v_and_b32 v0, 63, v0"),"v_lshlrev_b32 v5, 7, v0")
    else: A("v_lshlrev_b32 v5, 7, v0")
    A("v_min_u32 v6, L_codeend-L_pc-4, v5"); A("v_mov_b32 v9, s45"); A("v_add_co_u32 v8, vcc, s44, v6"); A("v_addc_co_u32 v9, vcc, 0, v9, vcc")
    A("global_load_dword v44, v[8:9], off")
    if pg and not tr:
        A("v_add_u32 v6, 8192, v5"); A("v_min_u32 v6, L_codeend-L_pc-4, v6"); A("v_mov_b32 v9, s45"); A("v_add_co_u32 v8, vcc, s44, v6"); A("v_addc_co_u32 v9, vcc, 0, v9, vcc")
        A("global_load_dword v45, v[8:9], off")
    A("L_nocpf:")
    A("s_and_b32 s12, s2, 7"); A("s_lshr_b32 s13, s2, 3")
    A("s_mov_b32 s38, 18432"); A("s_mov_b32 s39, 0x20000"); A("s_mov_b32 s42, 0x200000"); A("s_mov_b32 s43, 0x20000")
    A("v_and_b32 v3, 7, v0"); A("v_lshlrev_b32 v4, 4, v0")
    A("s_cmp_lt_u32 s2, 32" if ded else "s_cmp_eq_u32 s16, 3"); A("s_cbranch_scc1 L_helper")
    if ded: A("s_sub_u32 s13, s13, 4")
    if imb:
        A("s_cmp_lt_u32 s13, 12"); A(f"s_cselect_b32 s3, {NA}, {NB}"); A(f"s_movk_i32 s30, {-12*NB}"); A(f"s_cmovk_i32 s30, {20*NB-SK}"); A("s_mul_i32 s3, s3, s13"); A("s_add_i32 s3, s3, s30")
        A("s_mul_i32 s30, s12, 784"); A("s_add_u32 s3, s3, s30"); A("s_mul_i32 s3, s3, 3072")
    elif ded: A("s_mul_i32 s3, s12, 28"); A("s_add_u32 s3, s3, s13"); A(f"s_mul_i32 s3, s3, {REC}")
    elif xmap: A("s_lshl_b32 s3, s12, 5"); A("s_add_u32 s3, s3, s13"); A("s_mul_i32 s3, s3, 75264")
    else: A("s_mul_i32 s3, s2, 75264")
    A("v_lshrrev_b32 v2, 3, v0"); A("s_lshl_b32 s19, s16, 7")
    A("v_mul_u32_u24 v2, 384, v2"); A("v_lshl_add_u32 v2, v3, 4, v2"); A("v_add_u32 v1, s19, v2")
    A(f"s_mov_b32 s22, {REC}"); A("s_mov_b32 s23, 0x20000")
    st(15)
    A("s_waitcnt lgkmcnt(0)")
    st(11)
    A("s_add_u32 s20, s4, s3"); A("s_addc_u32 s21, s5, 0")
    if wf==1: A("s_cmp_ge_u32 s13, 12"); A("s_cbranch_scc1 L_nodma0"); A("s_mul_i32 s32, s16, 6144"); dma(); A("L_nodma0:")
    if imb: A("s_cmp_lt_u32 s13, 12"); A("s_cbranch_scc1 L_ld4")
    for j in range(nfull+1):
        r=D0+4*j
        if j==SK: A("L_ld4:")
        if md and j==md: A("s_mul_i32 s32, s16, 6144"); dma()
        if j>1 and j%2==0: A(("s_movk_i32 s30, 6144" if j==2 else "s_addk_i32 s30, 6144") if tr else f"s_mov_b32 s30, {j*3072}")
        A(f"buffer_load_dwordx4 v[{r}:{r+3}], v1, s[20:23], {'0' if j<2 else 's30'} offen offset:{3072*(j%2)} {lf}")
        if j==(SK+1 if imb else 1): A("s_load_dword s34, s[40:41], 0")
    st(1)
    A("s_add_u32 s24, s10, s3"); A("s_addc_u32 s25, s11, 0"); A(f"s_mov_b32 s26, {REC}"); A("s_mov_b32 s27, 0x20000")
    A("v_and_b32 v5, 1, v0"); A("v_lshlrev_b32 v5, 4, v5"); A("v_mov_b32 v6, 0x3f80"); A("v_lshlrev_b32 v5, v5, v6")
    A("v_bfe_u32 v6, v0, 2, 2")
    for d in range(4): A(f"v_cmp_eq_u32 vcc, {d}, v6"); A("s_nop 1"); A(f"v_cndmask_b32 v{8+d}, 0, v5, vcc")
    A("v_lshrrev_b32 v6, 4, v0"); A("v_lshlrev_b32 v40, 12, v6"); A("v_lshl_add_u32 v40, v3, 4, v40")
    A("s_mul_i32 s35, s12, 12"); A("s_lshl_b32 s30, s16, 2"); A("s_add_u32 s35, s35, s30"); A("s_lshl_b32 s35, s35, 5"); A("s_add_u32 s35, s35, s13")
    A("s_lshl_b32 s35, s35, 7"); A(f"s_add_u32 s35, s35, {INBOX}")
    if sw2: A("v_lshlrev_b32 v41, 5, v6"); A("v_xor_b32 v41, v41, v1")
    A("s_mul_i32 s32, s16, 6144"); A("s_mov_b32 s33, 0x7fff7fff")
    if imb:
        for d in range(4): A(f"v_mov_b32 v{12+d}, 0"); A(f"v_not_b32 v{16+d}, s33"); A(f"v_mov_b32 v{20+d}, -1")
    tag()
    if imb: A("s_cmp_lt_u32 s13, 12"); A("s_cbranch_scc1 L_ac4")
    for j in range(nfull+1):
        r=D0+4*j
        if imb:
            if j==SK: A("L_ac4:")
            A(f"s_waitcnt vmcnt({nfull-j})"); A(f"v_mfma_f32_16x16x32_bf16 v[12:15], v[8:11], v[{r}:{r+3}], v[12:15]")
            for d in range(4): A(f"v_pk_max_i16 v{16+d}, v{16+d}, v{r+d}"); A(f"v_pk_min_u16 v{20+d}, v{20+d}, v{r+d}")
            continue
        A(f"s_waitcnt vmcnt({nfull-j+(12 if j<md else 0)})")
        A(f"v_mfma_f32_16x16x32_bf16 v[12:15], v[8:11], v[{r}:{r+3}], "+("0" if j==0 else "v[12:15]"))
        if j==0: continue
        if j==nfull and not ded: A("s_mov_b64 exec, 0xffffffff")
        for d in range(4):
            A(f"v_pk_max_i16 v{16+d}, v{(D0 if j==1 else 16)+d}, v{r+d}"); A(f"v_pk_min_u16 v{20+d}, v{(D0 if j==1 else 20)+d}, v{r+d}")
        if j==nfull and not ded: ex(-1)
    st(2)
    for d in range(4): A(f"v_pk_ashrrev_i16 v{24+d}, 15, v{16+d} op_sel_hi:[0,1]"); A(f"v_xor_b32 v{20+d}, s33, v{20+d}")
    for d in (0,2,1,3): A(f"v_bfi_b32 v{16+d}, v{24+d}, v{20+d}, v{16+d}")
    dpp="row_ror:8 row_mask:0xf bank_mask:0xf"
    A("v_permlane32_swap_b32 v16, v18"); A(f"v_add_f32_dpp v12, v12, v12 {dpp}"); A("v_permlane32_swap_b32 v17, v19")
    A("v_pk_max_i16 v16, v16, v18"); A("v_pk_max_i16 v17, v17, v19")
    A(f"v_add_f32_dpp v13, v13, v13 {dpp}"); A("v_mov_b32 v15, s34")
    A("v_permlane16_swap_b32 v16, v17"); A("v_pk_max_i16 v16, v16, v17"); A("s_nop 1")
    A(f"v_mov_b32_dpp v17, v16 {dpp}"); A("v_pk_max_i16 v14, v16, v17")
    ex(0); A("buffer_store_dwordx4 v[12:15], v40, s[40:43], s35 offen"); ex(-1)
    st(3)
    if (nb if ded else ba in (0,3,4)): A("s_barrier")
    st(13)
    if nc or wf: A("s_cmp_lt_u32 s13, 12"); A("s_cbranch_scc1 L_nodma")
    if late: A("s_barrier")
    if not md: dma()
    A("L_nodma:")
    if ba in (1,4): A("s_barrier")
    if pg==1: A("s_branch L_p2"); A(".p2alignl 12, 0xbf810000"); A("L_p2:")
    if pg==2: A("s_branch L_p2"); A("@@H"); A(".p2alignl 12, 0xbf810000"); A("L_p2:")
    A(f"s_add_u32 s35, s35, {DUP}")
    if own:
        A("s_add_u32 s17, s16, 1"); A("s_cmp_eq_u32 s17, 3"); A("s_cselect_b32 s17, 0, s17"); A("s_add_u32 s18, s16, s17"); A("s_sub_u32 s18, 3, s18")
    A("v_bfe_u32 v5, v0, 2, 2"); A("v_lshrrev_b32 v6, 4, v0"); A("v_and_b32 v7, 3, v0")
    if w1c: A("v_lshrrev_b32 v24, 2, v0")
    else: A("v_lshl_add_u32 v24, v6, 3, v5")
    A("v_mul_u32_u24 v24, 96, v24"); A("v_lshl_add_u32 v24, v7, 3, v24")
    if own:
        A("s_mul_i32 s30, s17, 6144"); A("s_mul_i32 s31, s18, 6144"); A("v_add_u32 v30, s30, v24"); A("v_add_u32 v31, s31, v24"); A("v_add_u32 v29, s32, v24")
    def rd1():
        for t in range(3):
            for kb in range(6):
                for h in range(2):
                    r=A1+(t*6+kb)*4+2*h; k=kb%2 if own else kb
                    A(f"ds_read_b64_tr_b16 v[{r}:{r+1}], v{29+kb//2 if own else 24} offset:{W1L+(32*k+(16 if w1c else 4)*h)*96+32*t}")
    def rd2():
        for t in range(4):
            for ht in range(3):
                r=B2+t*4+2*ht if ht<2 else B2+16+2*t
                if sw2: A(f"ds_read_b64_tr_b16 {bv}[{r}:{r+1}], v{25+t} offset:{W2L+ht*2048}")
                else: A(f"ds_read_b64_tr_b16 {bv}[{r}:{r+1}], v25 offset:{W2L+16*ht*384+32*t}")
    A("v_lshrrev_b32 v25, 2, v0")
    if sw2:
        A("v_lshlrev_b32 v25, 7, v25"); A("v_lshl_add_u32 v25, v7, 3, v25"); A("v_bfe_u32 v26, v0, 3, 2"); A("v_lshl_add_u32 v25, v26, 5, v25"); A("v_add_u32 v25, s32, v25")
        for t in (1,2,3): A(f"v_xor_b32 v{25+t}, {32*t}, v25")
    else: A("v_mul_u32_u24 v25, 384, v25"); A("v_lshl_add_u32 v25, v7, 3, v25"); A("v_add_u32 v25, s19, v25")
    A("v_bfe_u32 v5, v0, 3, 2"); A("v_lshrrev_b32 v2, 5, v0"); A("v_lshlrev_b32 v8, 7, v2"); A("v_lshl_add_u32 v8, v5, 10, v8"); A("v_lshl_add_u32 v8, v3, 4, v8")
    A("v_lshl_add_u32 v5, v3, 2, v5"); A("v_lshl_add_u32 v5, v5, 1, v2")
    if w1c: A("v_and_b32 v9, 0x23, v5"); A("v_bfe_u32 v10, v5, 2, 2"); A("v_lshl_or_b32 v9, v10, 3, v9"); A("v_bfe_u32 v10, v5, 4, 1"); A("v_lshl_or_b32 v5, v10, 2, v9")
    A("v_lshl_add_u32 v5, v5, 1, s19")
    A("v_and_b32 v7, 1, v0"); A("v_mul_u32_u24 v7, 384, v7"); A("v_lshl_add_u32 v7, v6, 4, v7")
    if own: A("s_lshl_b32 s30, s17, 7"); A("s_lshl_b32 s31, s18, 7"); A("v_add_u32 v2, s30, v7"); A("v_add_u32 v6, s31, v7"); A("v_add_u32 v7, s19, v7")
    A("s_lshl_b32 s30, s16, 8"); A("v_lshl_add_u32 v4, v0, 2, s30"); A("v_lshl_add_u32 v3, v3, 5, s30")
    A("s_mul_i32 s30, s12, 12288"); A("s_lshl_b32 s31, s16, 12"); A("s_add_u32 s30, s30, s31"); A(f"s_add_u32 s30, s30, {OUT2}")
    A("s_mov_b32 s50, 0xffff0000"); A("s_mov_b32 s51, 0xffff0000"); A("s_mov_b32 s52, 0"); A("s_mov_b32 s53, -1"); A("s_brev_b32 s33, -2")
    A("s_waitcnt vmcnt(0)")
    if ba in (2,3): A("s_barrier")
    if sw2: rd2(); A("s_barrier"); st(12); rd1()
    else: A("s_barrier"); st(12); rd1(); rd2()
    A("s_mov_b32 s31, 0"); A("s_waitcnt lgkmcnt(0)")
    if dly: A(f"s_sleep {dly}")
    st(10)
    c1=["v_pk_max_i16 v26, v26, v30","v_pk_add_f32 v[24:25], v[24:25], v[28:29]"]
    c2=["v_pk_max_i16 v34, v34, v38","v_pk_add_f32 v[32:33], v[32:33], v[36:37]","v_pk_max_i16 v26, v26, v34","v_pk_add_f32 v[24:25], v[24:25], v[32:33]"]
    def poll(name,vaddr,step,slow,n):
        A(f"{name}:")
        for i in range(4):
            hf=ded and name=="L_poll1" and i==3
            if hf: A("s_mov_b64 exec, 0xffffffff")
            A(f"buffer_load_dwordx4 v[{24+4*i}:{27+4*i}], {vaddr}, s[40:43], s30 offen offset:{i*step} sc1")
            if hf: ex(-1)
        A("s_add_u32 s31, s31, 1"); A(f"s_cmp_ge_u32 s31, {n}"); A(f"s_cbranch_scc1 {slow}"); A(f"{name}r:")
        A("s_waitcnt vmcnt(2)"); A("v_cmp_ne_u32 vcc, s34, v27"); A("v_cmp_ne_u32 s[44:45], s34, v31")
        if early: L.extend(c1)
        A("s_or_b64 s[44:45], vcc, s[44:45]")
        A("s_waitcnt vmcnt(0)"); A("v_cmp_ne_u32 vcc, s34, v35"); A("v_cmp_ne_u32 s[46:47], s34, v39")
        if early: L.extend(c2)
        A("s_or_b64 s[44:45], vcc, s[44:45]"); A("s_or_b64 s[44:45], s[44:45], s[46:47]"); A(f"s_cbranch_scc1 {name}")
        A(f"{name}x:")
        if not early: L.extend(c1+c2)
    poll("L_poll2","v8",256,"L_slow2",fb2)
    st(4)
    if cw==5: A("s_or_b32 s31, s13, s16"); A("s_cbranch_scc1 L_ncw"); A("buffer_wbl2 sc1"); A("L_ncw:")
    if clean==1: A(f"s_xor_b32 s35, s35, {DUP}"); ex(0); A(f"buffer_store_dwordx4 v[12:15], v40, s[40:43], s35 offen {cf}"); ex(-1)
    if clean==4: ex(0); A(f"buffer_store_dwordx4 v[12:15], v40, s[40:43], s35 offen {cf}"); ex(-1)
    if clean==5: A(f"buffer_store_dwordx4 v[12:15], v1, s[24:27], 0 offen {sf}")
    A("v_lshlrev_b32 v27, 16, v26"); A("s_nop 0")
    A("v_permlane32_swap_b32 v24, v25"); A("v_permlane32_swap_b32 v27, v26")
    A("v_add_f32 v24, v24, v25"); A("v_max_i32 v26, v26, v27")
    A("v_mul_f32 v24, 0x37a72f05, v24"); A("v_ashrrev_i32 v27, 31, v26")
    A("v_cvt_pk_bf16_f32 v24, v24, v24"); A("v_bitop3_b32 v26, v26, v27, s33 bitop3:0x78")
    A(f"ds_write_b16 v5, v24 offset:{VECL}"); A(f"ds_write_b16_d16_hi v5, v26 offset:{VECL+384}")
    def vrd(kb): A(f"ds_read_b128 v[{24+4*kb}:{27+4*kb}], v{(7,2,6)[kb//2] if own else 7} offset:{VECL+64*(kb%2 if own else kb)}")
    def g1(t,kb):
        d=8+4*t; a=A1+(t*6+kb)*4
        A(f"v_mfma_f32_16x16x32_bf16 v[{d}:{d+3}], v[{a}:{a+3}], v[{24+4*kb}:{27+4*kb}], "+("0" if kb==0 else f"v[{d}:{d+3}]"))
    def relu(t,dst):
        d=8+4*t
        return [f"v_maximum3_f32 v{d+r}, v{d+r}, 0, 0" for r in range(4)]+[f"v_cvt_pk_bf16_f32 v{dst}, v{d}, v{d+1}",f"v_cvt_pk_bf16_f32 v{dst+1}, v{d+2}, v{d+3}"]
    r0,r1,r2=relu(0,20),relu(1,22),relu(2,8)
    if own:
        vrd(0); vrd(1); A("s_waitcnt lgkmcnt(2)"); A("s_barrier"); st(14)
        if cw==2: A("s_or_b32 s31, s13, s16"); A("s_cbranch_scc1 L_ncw"); A("buffer_wbl2 sc1"); A("L_ncw:")
        if clean==6: A(f"s_xor_b32 s35, s35, {DUP}"); ex(0); A(f"buffer_store_dwordx4 v[12:15], v40, s[40:43], s35 offen {cf}"); ex(-1)
        for kb in range(2,6): vrd(kb)
        for kb in range(2):
            A(f"s_waitcnt lgkmcnt({5-kb})")
            for t in range(3): g1(t,kb)
        for kb in range(2,6): A(f"s_waitcnt lgkmcnt({5-kb})"); g1(0,kb)
        g1(1,2); A("s_nop 1"); g1(1,3); A("s_nop 1"); g1(1,4); A("s_nop 0"); A(r0[0]); g1(1,5); L.extend(r0[1:3]); g1(2,2); L.extend(r0[3:5]); g1(2,3)
        A(r0[5]); A("s_nop 0"); g1(2,4); L.extend(r1[0:2]); g1(2,5); L.extend(r1[2:6]); A("s_nop 1")
    else:
        A("s_waitcnt lgkmcnt(0)"); A("s_barrier"); st(14)
        for kb in range(6): vrd(kb)
        for kb in range(6): A(f"s_waitcnt lgkmcnt({5-kb})"); g1(0,kb)
        for kb in range(6): g1(1,kb)
        g1(2,0); g1(2,1); L.extend(r0); g1(2,2); g1(2,3); L.extend(r1); g1(2,4); g1(2,5)
    def g2a(t): A(f"v_mfma_f32_16x16x32_bf16 v[{24+4*t}:{27+4*t}], v[20:23], {bv}[{B2+4*t}:{B2+4*t+3}], 0")
    if own: g2a(0); A("s_nop 0"); A(r2[0]); g2a(1); L.extend(r2[1:3]); g2a(2); L.extend(r2[3:5]); g2a(3); A(r2[5]); A("s_nop 1")
    else: g2a(0); A("s_nop 1"); g2a(1); A("s_nop 1"); g2a(2); A("s_nop 0"); A(r2[0]); g2a(3); L.extend(r2[1:]); A("s_nop 1")
    for t in range(4): A(f"v_mfma_f32_16x16x16_bf16 v[{24+4*t}:{27+4*t}], v[8:9], {bv}[{B2+16+2*t}:{B2+17+2*t}], v[{24+4*t}:{27+4*t}]")
    def unpack(j):
        r=D0+4*j; T=16 if j%2==0 else 40
        for d in range(4): A(f"v_lshlrev_b32 v{T+2*d}, 16, v{r+d}"); A(f"v_and_b32 v{T+2*d+1}, s50, v{r+d}")
    A("s_nop 5")
    A("v_cndmask_b32 v24, v24, v28, s[50:51]"); A("v_cndmask_b32 v25, v25, v29, s[50:51]")
    A("v_cndmask_b32 v32, v32, v36, s[50:51]"); A("v_cndmask_b32 v33, v33, v37, s[50:51]")
    A("v_cndmask_b32 v24, v24, v32, s[52:53]"); A("v_cndmask_b32 v25, v25, v33, s[52:53]")
    A("v_cvt_pk_bf16_f32 v24, 0, v24"); A("v_cvt_pk_bf16_f32 v25, 0, v25"); A("v_add_f32 v24, v24, v25"); A("v_cvt_pk_bf16_f32 v24, 0, v24")
    A("v_mul_f32 v24, 0xbfb8aa3b, v24"); A("v_exp_f32 v24, v24"); A("s_nop 0")
    A("v_add_f32 v24, 1.0, v24"); A("v_rcp_f32 v24, v24"); A("s_nop 0"); A("v_cvt_pk_bf16_f32 v24, 0, v24")
    A(f"ds_write_b32 v4, v24 offset:{SCL}")
    st(5)
    if cw==4: A("s_or_b32 s31, s13, s16"); A("s_cbranch_scc1 L_ncw"); A("buffer_wbl2 sc1"); A("L_ncw:")
    A(f"ds_read_b128 v[8:11], v3 offset:{SCL}"); A(f"ds_read_b128 v[12:15], v3 offset:{SCL+16}")
    order=list(range(SK,NB))+list(range(SK)) if imb else list(range(nfull+1))
    unpack(order[0]); unpack(order[1]); A("s_waitcnt lgkmcnt(0)")
    for n,j in enumerate(order):
        r=D0+4*j; T=16 if j%2==0 else 40
        if imb and j==0: A("s_cmp_lt_u32 s13, 12"); A("s_cbranch_scc1 L_stx")
        if n>1: unpack(j)
        for d in range(4): A(f"v_pk_mul_f32 v[{T+2*d}:{T+2*d+1}], v[{T+2*d}:{T+2*d+1}], v[{8+2*d}:{9+2*d}]")
        if j>1 and j%2==0: A(f"s_mov_b32 s30, {j*3072}")
        for d in range(4): A(f"v_cvt_pk_bf16_f32 v{r+d}, v{T+2*d}, v{T+2*d+1}")
        A(f"buffer_store_dwordx4 v[{r}:{r+3}], v1, s[24:27], {'0' if j<2 else 's30'} offen offset:{3072*(j%2)} {sf}")
    A("L_stx:")
    if cw==3: A("s_or_b32 s31, s13, s16"); A("s_cbranch_scc1 L_ncw"); A("buffer_wbl2 sc1"); A("L_ncw:")
    def ws(ks):
        A("s_waitcnt lgkmcnt(0)"); A("s_lshl_b32 s30, s2, 7"); A("s_add_u32 s30, s30, 0x8000000"); A("s_mov_b64 exec, 1"); A("v_mov_b32 v2, s30")
        for k in ks: A(f"v_mov_b32 v40, s{60+2*k}"); A(f"v_mov_b32 v41, s{61+2*k}"); A(f"global_store_dwordx2 v2, v[40:41], s[40:41] offset:{8*k}"); A("s_nop 1")
        ex(-1)
    if diag: st(6); A("s_waitcnt vmcnt(0)"); st(7); A(f"s_cmp_lg_u32 s16, {sw}"); A("s_cbranch_scc1 L_end"); ws([0,1,2,3,4,5,6,7,10,11,12,13,14,15])
    if probe: A("v_lshlrev_b32 v4, 4, v0"); addprobe(A,st,probe,sw)
    A("L_end:"); A("s_endpgm")
    hs=len(L)
    A("L_slow2:"); A(f"s_cmp_gt_u32 s31, {LIM}"); A("s_cbranch_scc1 L_to2"); A(f"s_cmp_lg_u32 s31, {fb2}"); A("s_cbranch_scc1 L_poll2r")
    ex(0); A("buffer_store_dwordx4 v[12:15], v40, s[40:43], s35 offen sc1"); ex(-1); A("s_waitcnt vmcnt(0)"); A("s_branch L_poll2r")
    A("L_to2:"); A("s_waitcnt vmcnt(0)"); A("s_branch L_poll2x")
    A("L_slow1:"); A(f"s_cmp_gt_u32 s31, {LIM}"); A("s_cbranch_scc1 L_to1"); A(f"s_xor_b32 s30, s30, {DUP}")
    if not ded: A(f"s_cmp_lg_u32 s31, {fb}"); A("s_cbranch_scc1 L_poll1r"); A("s_barrier")
    if late: A("s_barrier")
    A("s_branch L_poll1r")
    A("L_to1:"); A("s_waitcnt vmcnt(0)"); A("s_branch L_poll1x")
    A("L_helper:")
    if ded:
        A("s_mul_i32 s13, s13, 3"); A("s_add_u32 s13, s13, s16")
        A("v_lshlrev_b32 v5, 7, v0"); A("s_cmp_lt_u32 s13, 6"); A("s_cselect_b32 s33, 0, 6"); A("s_sub_u32 s33, s13, s33"); A("s_mul_i32 s33, s33, 3072")
        A("s_mul_i32 s30, s12, 12"); A("s_add_u32 s30, s30, s13"); A("s_lshl_b32 s31, s30, 10"); A("s_lshl_b32 s30, s30, 12")
        A(f"s_add_u32 s30, s30, {INBOX}"); A(f"s_add_u32 s31, s31, {OUT2}")
        A("s_waitcnt lgkmcnt(0)"); A("s_load_dword s34, s[40:41], 0")
        A("s_cmp_lt_u32 s13, 6"); A("s_cselect_b32 s36, s6, s8"); A("s_cselect_b32 s37, s7, s9")
        A("s_mov_b64 exec, 0xffffff"); A("buffer_load_dword v43, v5, s[36:39], s33 offen"); ex(-1)
        A("buffer_load_dword v47, v4, s[40:43], s31 offen sc1")
        A("v_lshrrev_b32 v5, 3, v0"); A("v_mul_u32_u24 v5, 12288, v5"); A("v_lshl_add_u32 v5, v3, 4, v5")
        A("s_lshl_b32 s35, s13, 10"); A("s_lshl_b32 s31, s12, 7"); A("s_add_u32 s35, s35, s31"); A(f"s_add_u32 s35, s35, {OUT2}")
        A("v_mov_b32 v36, 0"); A("v_mov_b32 v37, 0"); A("v_mov_b32 v38, 0x80008000")
        tag(); A("v_mov_b32 v39, s34"); A("s_mov_b32 s31, 0"); A("s_waitcnt vmcnt(0)")
    else:
        A("v_lshlrev_b32 v5, 7, v0"); A("s_and_b32 s33, s13, 15"); A("s_mul_i32 s33, s33, 1152")
        A("s_mul_i32 s30, s12, 12"); A("s_add_u32 s30, s30, s13"); A("s_lshl_b32 s31, s30, 10"); A("s_lshl_b32 s30, s30, 12")
        A(f"s_add_u32 s30, s30, {INBOX}"); A(f"s_add_u32 s31, s31, {OUT2}"); A("v_lshlrev_b32 v6, 6, v0")
        A("s_waitcnt lgkmcnt(0)"); A("s_load_dword s34, s[40:41], 0")
        A("s_cmp_lt_u32 s13, 16"); A("s_cselect_b32 s36, s6, s8"); A("s_cselect_b32 s37, s7, s9")
        A("s_mov_b64 exec, 0x1ff"); A("buffer_load_dword v43, v5, s[36:39], s33 offen"); ex(-1)
        A("s_cmp_ge_u32 s13, 12"); A("s_cbranch_scc1 L_end")
        A("buffer_load_dword v46, v6, s[40:43], s30 offen sc1"); A("buffer_load_dword v47, v4, s[40:43], s31 offen sc1")
        A("v_lshrrev_b32 v5, 3, v0"); A("v_mul_u32_u24 v5, 12288, v5"); A("v_lshl_add_u32 v5, v3, 4, v5")
        A("s_lshl_b32 s35, s13, 10"); A("s_lshl_b32 s31, s12, 7"); A("s_add_u32 s35, s35, s31"); A(f"s_add_u32 s35, s35, {OUT2}")
        if wf==2:
            for lo,base in ((6,W1L),(8,W2L)):
                A(f"s_mov_b32 s36, s{lo}"); A(f"s_mov_b32 s37, s{lo+1}")
                for i in range(18):
                    if i%4==0: A(f"s_mov_b32 m0, {base+i*1024}"); A(f"s_mov_b32 s31, {i*1024}")
                    A(f"buffer_load_dwordx4 v4, s[36:39], s31 offen offset:{(i%4)*1024} lds")
        tag(); A("s_mov_b32 s31, 0"); A("s_waitcnt vmcnt(0)"); A("s_barrier")
        if ba in (3,4): A("s_barrier")
        if rd: A(f"s_sleep {rd}")
    if pd:
        def mk(d,i):
            if not pk: return ("vcc","s[44:45]","vcc","s[46:47]")[i]
            m=(48,62,80,88)[d]+2*i; return f"s[{m}:{m+1}]"
        def iss(d):
            b=64+16*d
            for i in range(4):
                if pk: A(f"s_or_b64 exec, {mk(d,i)}, 1")
                elif i==3: A("s_mov_b64 exec, 0xffffffff")
                A(f"buffer_load_dwordx4 v[{b+4*i}:{b+3+4*i}], v4, s[40:43], s30 offen offset:{i*1024} sc1")
            ex(-1)
        A("v_mov_b32 v27, s34")
        for d in range(pd):
            for i in range(4): A(f"v_mov_b32 v{76+16*d+i}, v{36+i}")
            if pk:
                for i in range(4): A(f"s_mov_b64 {mk(d,i)}, {'0xffffffff' if i==3 else -1}")
        for d in range(pd-1): iss(d)
        A("L_poll1:")
        A("s_add_u32 s31, s31, 1"); A(f"s_cmp_ge_u32 s31, {fb}"); A("s_cbranch_scc1 L_slow1"); A("L_poll1r:")
        for d in range(pd):
            b=64+16*d; iss((d+pd-1)%pd)
            A(f"s_waitcnt vmcnt({4*pd-2})"); A(f"v_cmp_ne_u32 {mk(d,0)}, s34, v{b+3}"); A(f"v_cmp_ne_u32 {mk(d,1)}, s34, v{b+7}")
            A(f"v_pk_max_i16 v26, v{b+2}, v{b+6}"); A(f"v_pk_add_f32 v[24:25], v[{b}:{b+1}], v[{b+4}:{b+5}]")
            A(f"s_or_b64 s[44:45], {mk(d,0)}, {mk(d,1)}")
            A(f"s_waitcnt vmcnt({4*pd-4})"); A(f"v_cmp_ne_u32 {mk(d,2)}, s34, v{b+11}"); A(f"v_cmp_ne_u32 {mk(d,3)}, s34, v{b+15}")
            A(f"v_pk_max_i16 v34, v{b+10}, v{b+14}"); A(f"v_pk_add_f32 v[32:33], v[{b+8}:{b+9}], v[{b+12}:{b+13}]"); L.extend(c2[2:])
            A(f"s_or_b64 s[44:45], {mk(d,2)}, s[44:45]"); A(f"s_or_b64 s[44:45], s[44:45], {mk(d,3)}")
            A("s_cbranch_scc0 L_poll1x" if d<pd-1 else "s_cbranch_scc1 L_poll1")
        A("L_poll1x:")
    else: poll("L_poll1","v4",1024,"L_slow1",fb)
    st(8)
    A("s_nop 0")
    A(f"v_mov_b32_dpp v30, v26 {dpp}"); A(f"v_add_f32_dpp v24, v24, v24 {dpp}"); A(f"v_add_f32_dpp v25, v25, v25 {dpp}"); A("v_pk_max_i16 v26, v26, v30")
    for w in ("16","32"):
        A("v_mov_b32 v28, v24"); A("v_mov_b32 v29, v25"); A("v_mov_b32 v30, v26")
        A(f"v_permlane{w}_swap_b32 v24, v28"); A(f"v_permlane{w}_swap_b32 v25, v29"); A(f"v_permlane{w}_swap_b32 v26, v30")
        A("v_add_f32 v24, v24, v28"); A("v_add_f32 v25, v25, v29"); A("v_pk_max_i16 v26, v26, v30")
    A("buffer_store_dwordx4 v[24:27], v5, s[40:43], s35 offen sc1")
    st(9)
    if ded:
        if diag: A("s_cmp_lg_u32 s16, 0"); A("s_cbranch_scc1 L_nows"); ws((0,8,9)); A("L_nows:")
        if cw==6:
            A("s_cmp_lg_u32 s13, 0"); A("s_cbranch_scc1 L_poll4x"); A("s_mul_i32 s30, s12, 12416"); A(f"s_add_u32 s30, s30, {OUT2+12}"); A("s_mov_b32 s31, 0")
            A("L_poll4:")
            for i in range(12): A(f"s_load_dword s{80+i}, s[40:41], s30 offset:{1024*i} glc")
            A("s_add_u32 s31, s31, 1"); A("s_cmp_gt_u32 s31, 64"); A("s_waitcnt lgkmcnt(0)"); A("s_cbranch_scc1 L_poll4w"); A("s_mov_b32 s35, s34")
            for i in range(0,12,2): A(f"s_xor_b64 s[{80+i}:{81+i}], s[{80+i}:{81+i}], s[34:35]")
            for i in range(2,12,2): A(f"s_or_b64 s[80:81], s[80:81], s[{80+i}:{81+i}]")
            A("s_cbranch_scc1 L_poll4"); A("L_poll4w:"); A("buffer_wbl2 sc1"); A("L_poll4x:")
        if cw==7: A("s_cmp_lg_u32 s13, 0"); A("s_cbranch_scc1 L_poll4x"); A("buffer_wbl2 sc1"); A("L_poll4x:")
        if pd: A("s_waitcnt vmcnt(0)")
        A("s_cmp_lg_u32 s13, 0"); A("s_cbranch_scc1 L_end")
        A("s_mul_i32 s30, s12, 12288"); A(f"s_add_u32 s30, s30, {OUT2}"); A("s_add_u32 s33, s30, 4096"); A("v_lshlrev_b32 v5, 7, v0"); A("s_mov_b32 s31, 0"); A("s_waitcnt vmcnt(0)")
        if cw==1: A("buffer_wbl2 sc1")
        if cw: A("s_cmp_lg_u32 s2, 0"); A("s_cbranch_scc1 L_end")
        A("L_poll3:"); A("buffer_load_dword v24, v5, s[40:43], s30 offen offset:12 sc1"); A("buffer_load_dword v25, v5, s[40:43], s33 offen offset:12 sc1")
        A("s_add_u32 s31, s31, 1"); A(f"s_cmp_gt_u32 s31, {LIM}"); A("s_cbranch_scc1 L_poll3x"); A("s_waitcnt vmcnt(0)")
        A("v_cmp_ne_u32 vcc, s34, v24"); A("v_cmp_ne_u32 s[44:45], s34, v25"); A("s_or_b64 vcc, vcc, s[44:45]"); A("s_cbranch_scc1 L_poll3")
        A("L_poll3x:"); A("v_mov_b32 v27, s34")
        if clean==7 and not cw: A("buffer_wbl2 sc1")
    else:
        A(f"s_cmp_ge_u32 s31, {fb}"); A("s_cbranch_scc1 L_rb2"); A("s_barrier")
        if late: A("s_barrier")
        A("L_rb2:")
        A(f"s_andn2_b32 s30, s30, {DUP}"); A("v_mov_b32 v27, s34")
        def cl():
            for i in range(4): A(f"buffer_store_dwordx4 v[24:27], v4, s[40:43], s30 offen offset:{i*1024} {cf}")
        if clean==3: cl()
        if clean==8: A("s_cmp_lg_u32 s13, 0"); A("s_cbranch_scc1 L_nowb"); A("buffer_wbl2 sc1"); A("L_nowb:")
        A("s_barrier")
        if clean==2: cl()
        if clean==7: A("s_cmp_lg_u32 s13, 0"); A("s_cbranch_scc1 L_noep"); A("buffer_wbl2 sc1")
    A("s_cmp_lg_u32 s2, 0"); A("s_cbranch_scc1 L_noep")
    A("s_mov_b64 exec, 1"); A("buffer_store_dword v27, v4, s[40:43], 0 offen sc1"); ex(-1)
    A("L_noep:")
    if diag and not ded: ws((8,9))
    A("s_endpgm")
    if pg==2:
        H=L[hs:]; del L[hs:]; i=L.index("@@H")
        if pm: mv=L[i+3:i+3+pm]; del L[i+3:i+3+pm]; L[i-1:i-1]=mv; i+=pm
        L[i:i+1]=H
    A("L_codeend:")
    a,b,l,vg=wrap(L,192 if ded else 256,LDS,NV,sg)
    if imb==2: a=a.replace(f"next_free_vgpr {vg}",f"next_free_vgpr {vg+24}")
    if pg==2: a=a.replace(".p2align 8\n",".p2align 12\n.fill 704, 4, 0xbf810000\n.p2align 8\n")
    return a,b,l,vg
def ren(i):
    for r in (1,2): gen1.specs.append(gen1.specs[i].replace(KN,f'__hx_renum{r}_256_{KN}'))
```
